```python
import torch

def _softmax(x, axis=-1):
    return torch.softmax(x, dim=axis)

def _gelu(x):
    return torch.nn.functional.gelu(x, approximate='tanh')

def _silu(x):
    return torch.nn.functional.silu(x)

def _sigmoid(x):
    return torch.sigmoid(x)

def _layernorm(x, axis=-1, eps=1e-05):
    m = x.mean(dim=axis, keepdim=True)
    v = x.var(dim=axis, keepdim=True, unbiased=False)
    return (x - m) / torch.sqrt(v + eps)

def _scatter_add(tgt, idx, src, axis=0):
    return tgt.clone().index_add_(axis, idx, src)

def _segment_sum(src, seg, n):
    out = torch.zeros((n,) + src.shape[1:], dtype=src.dtype)
    return out.index_add_(0, seg, src)

def _pad(x, pw):
    flat = tuple((v for pair in reversed(pw) for v in pair))
    return torch.nn.functional.pad(x, flat)
kernel_name = 'standalone__tree_speculative_verify_tree_attention_over_candidate_token_tree__decode'

def setup_inputs():

    _w = lambda a: (lambda t: t.to(torch.bfloat16) if t.is_floating_point() else t)(torch.as_tensor(a))
    B, Hq, Hkv, T, C, D = (2, 32, 16, 1, 8192, 128)
    tree_mask = torch.zeros((B, T, T), dtype=float)
    for b in range(B):
        parent = torch.zeros(T, dtype=torch.int64)
        for i in range(1, T):
            parent[i] = int(torch.randint(0, i, (1,)).item())
        for i in range(T):
            j = i
            tree_mask[b, i, j] = 1.0
            while j > 0:
                j = parent[j]
                tree_mask[b, i, j] = 1.0
    return {'q': _w((lambda *s: torch.randn(*s, dtype=torch.bfloat16) * 0.8)(B, Hq, T, D)), 'k_cache': _w((lambda *s: torch.randn(*s, dtype=torch.bfloat16) * 0.8)(B, Hkv, C, D)), 'v_cache': _w((lambda *s: torch.randn(*s, dtype=torch.bfloat16) * 0.05)(B, Hkv, C, D)), 'k_tree': _w((lambda *s: torch.randn(*s, dtype=torch.bfloat16) * 0.8)(B, Hkv, T, D)), 'v_tree': _w((lambda *s: torch.randn(*s, dtype=torch.bfloat16) * 0.05)(B, Hkv, T, D)), 'tree_mask': _w(tree_mask)}

def reference(q, k_cache, v_cache, k_tree, v_tree, tree_mask):
    B, Hq, T, D = q.shape
    Hkv, C = (k_cache.shape[1], k_cache.shape[2])
    rep = Hq // Hkv
    kc = (lambda x, n, axis: torch.repeat_interleave(x, n, dim=axis))(k_cache, rep, axis=1)
    vc = (lambda x, n, axis: torch.repeat_interleave(x, n, dim=axis))(v_cache, rep, axis=1)
    kt = (lambda x, n, axis: torch.repeat_interleave(x, n, dim=axis))(k_tree, rep, axis=1)
    vt = (lambda x, n, axis: torch.repeat_interleave(x, n, dim=axis))(v_tree, rep, axis=1)
    k = torch.concatenate([kc, kt], axis=2)
    v = torch.concatenate([vc, vt], axis=2)
    scale = D ** (-0.5)
    scores = torch.einsum('bhqd,bhkd->bhqk', q, k) * scale
    ctx_mask = torch.ones((B, 1, T, C), dtype=scores.dtype)
    tm = tree_mask[:, None, :, :].clone()
    full_mask = torch.concatenate([ctx_mask, tm], axis=-1)
    scores = scores + (1.0 - full_mask) * -1000000000.0
    p = _softmax(scores, axis=-1)
    return torch.einsum('bhqk,bhkd->bhqd', p, v)
```

```python
import sys, math, struct

NAME = "standalone__tree_speculative_verify_tree_attention_over_candidate_token_tree__decode"

HEADER = """; Kernarg layout for this problem (72 bytes, ptrs only, base s[0:1]):
;   offset  24: d_in[3] k_tree  shape=(2, 16, 1, 128) dtype=bfloat16 strides=(4096, 256, 256, 2) contiguous=True
;   offset  32: d_in[4] v_tree  shape=(2, 16, 1, 128) dtype=bfloat16 strides=(4096, 256, 256, 2) contiguous=True
;   offset  40: d_in[5] tree_mask  shape=(2, 1, 1) dtype=bfloat16 strides=(2, 2, 2) contiguous=True
"""

def f32hex(x):
    return "0x%08x" % struct.unpack("<I", struct.pack("<f", x))[0]

def gen(NW=4, R=24, U=1, cflag="nt", wgmap="pm", stamps=0, lds_extra=0, aflags="sc0 sc1"):
    NSPLIT = 8
    NWG = 32 * NSPLIT
    T = 8192 // NSPLIT // NW // 4
    L = []
    cnt = [0]
    def A(s):
        L.append("    " + s)
        m = s.split()
        cnt[0] += (int(m[1]) + 1) if m[0] == "s_nop" else 1
    def pad_since(pos, need):
        have = cnt[0] - pos
        if have < need:
            A("s_nop %d" % (need - have - 1))
    def C(s): L.append("    ; " + s)
    def LBL(s): L.append(s + ":")

    vKOFF, vVOFF = 1, 2
    vT0, vT1, vT2 = 3, 36, 37
    vQ = 4
    vD = [8, 12, 16, 20]
    vKT, vVT = 24, 28
    vMASK = 32
    vBIAS, vL, vACC, vLANE, vLDSA, vM, vNMC = 38, 39, 40, 44, 45, 46, 47
    SREG = 48
    RING = (SREG + T + 1 + 3) // 4 * 4
    total_v = (RING + 4 * R + 7) // 8 * 8
    assert total_v <= 256

    OFF_M, OFF_L, OFF_O = 0, 128, 256
    LDS = OFF_O + NW * 1024 + lds_extra
    cscale = (128 ** -0.5) * math.log2(math.e)

    sK, sV, sQ, sKT, sVT, sOUT, sDBG, sWS = 4, 8, 12, 16, 20, 24, 28, 32
    sMP = 36
    sP, sS, sWV, sMASK, sC, sTMP, sTMP2, sKO, sVO = 40, 41, 42, 43, 44, 45, 46, 47, 48
    sST = 64
    def stamp(k):
        if stamps:
            A("s_memrealtime s[%d:%d]" % (sST + 2 * k, sST + 2 * k + 1))

    if stamps:
        for k in range(16):
            A("s_mov_b32 s%d, 0" % (sST + k))
        stamp(0)
    A("s_load_dwordx2 s[%d:%d], s[0:1], 8" % (sK, sK + 1))
    A("s_load_dwordx2 s[%d:%d], s[0:1], 0" % (sQ, sQ + 1))
    A("s_load_dwordx2 s[%d:%d], s[0:1], 16" % (sV, sV + 1))
    A("s_load_dwordx2 s[%d:%d], s[0:1], 24" % (sKT, sKT + 1))
    A("s_load_dwordx2 s[%d:%d], s[0:1], 32" % (sVT, sVT + 1))
    A("s_load_dwordx2 s[%d:%d], s[0:1], 40" % (sMP, sMP + 1))
    A("s_cmp_ge_u32 s2, %d" % NWG)
    A("s_cbranch_scc1 L_end")
    if wgmap == "pm":
        A("s_lshr_b32 s%d, s2, 3" % sP)
        A("s_and_b32 s%d, s2, 7" % sS)
        A("s_lshl_b32 s%d, s2, 18" % sKO)
    else:
        A("s_and_b32 s%d, s2, 31" % sP)
        A("s_lshr_b32 s%d, s2, 5" % sS)
        A("s_lshl_b32 s%d, s%d, 21" % (sKO, sP))
        A("s_lshl_b32 s%d, s%d, 18" % (sTMP, sS))
        A("s_add_u32 s%d, s%d, s%d" % (sKO, sKO, sTMP))
    C("K lane offset: w*U*1024 + ((l%16)/4)*256 + (l%4)*16 + (l/16)*64")
    A("v_and_b32 v%d, 3, v0" % vT2)
    A("v_bfe_u32 v%d, v0, 4, 2" % vT1)
    A("v_lshlrev_b32 v%d, 6, v%d" % (vT1, vT1))
    A("v_lshl_add_u32 v%d, v%d, 4, v%d" % (vT2, vT2, vT1))
    A("v_bfe_u32 v%d, v0, 2, 2" % vT1)
    A("v_lshl_add_u32 v%d, v%d, 8, v%d" % (vKOFF, vT1, vT2))
    A("v_lshrrev_b32 v%d, 6, v0" % vT0)
    A("v_lshl_add_u32 v%d, v%d, %d, v%d" % (vKOFF, vT0, 10 + int(math.log2(U)), vKOFF))
    C("Q lane offset: h*256 + chunk, h = (l>>3)&1 ; soffset p*512")
    A("v_bfe_u32 v%d, v0, 3, 1" % vT1)
    A("v_lshl_add_u32 v%d, v%d, 8, v%d" % (vT1, vT1, vT2))
    A("s_lshl_b32 s%d, s%d, 9" % (sTMP, sP))
    A("s_mov_b32 s%d, 0x4000000" % (sK + 2))
    A("s_mov_b32 s%d, 0x20000" % (sK + 3))
    A("s_movk_i32 s%d, 0x4000" % (sQ + 2))
    A("s_mov_b32 s%d, 0x20000" % (sQ + 3))
    A("s_mov_b32 s%d, s%d" % (sVO, sKO))
    A("s_waitcnt lgkmcnt(0)")

    issued = []
    def waitfor(tag):
        idx = issued.index(tag)
        n = len(issued) - 1 - idx
        assert n <= 63
        A("s_waitcnt vmcnt(%d)" % n)
    A("buffer_load_dwordx4 v[%d:%d], v%d, s[%d:%d], s%d offen" % (vQ, vQ + 3, vT1, sQ, sQ + 3, sTMP))
    issued.append("q")

    def slot(j): return RING + 4 * (j % R)
    cur = {0: 0, 1: 0}
    def issue(j):
        isK = j < T
        i = j if isK else j - T
        b = (i // U) * (NW * U * 1024) + (i % U) * 1024
        so = sKO if isK else sVO
        k = 0 if isK else 1
        if b - cur[k] >= 4096:
            adv = (b - cur[k]) // 4096 * 4096
            A("s_add_u32 s%d, s%d, 0x%x" % (so, so, adv))
            cur[k] += adv
        imm = b - cur[k]
        r = slot(j)
        cf = cflag.split(",")[0 if isK else -1]
        A("buffer_load_dwordx4 v[%d:%d], v%d, s[%d:%d], s%d offen%s%s" % (
            r, r + 3, vKOFF if isK else vVOFF, sK if isK else sV, (sK if isK else sV) + 3, so,
            (" offset:%d" % imm) if imm else "", (" " + cf) if cf else ""))
        issued.append(j)

    for j in range(R):
        issue(j)

    C("remaining setup while loads fly")
    A("s_load_dword s%d, s[%d:%d], 0" % (sMASK, sMP, sMP + 1))
    A("s_load_dwordx2 s[%d:%d], s[0:1], 48" % (sOUT, sOUT + 1))
    A("s_load_dwordx2 s[%d:%d], s[0:1], 56" % (sDBG, sDBG + 1))
    A("s_load_dwordx2 s[%d:%d], s[0:1], 64" % (sWS, sWS + 1))
    for s, n in ((sV, 0x4000000), (sKT, 8192), (sVT, 8192), (sOUT, 16384), (sDBG, 256), (sWS, NWG * 2048)):
        A("s_mov_b32 s%d, 0x%x" % (s + 2, n))
        A("s_mov_b32 s%d, 0x20000" % (s + 3))
    if stamps:
        A("s_getreg_b32 s%d, hwreg(HW_REG_XCC_ID)" % (sST + 2))
        A("s_getreg_b32 s%d, hwreg(HW_REG_HW_ID)" % (sST + 3))
    A("v_and_b32 v%d, 63, v0" % vLANE)
    A("v_lshlrev_b32 v%d, 4, v%d" % (vVOFF, vLANE))
    A("v_lshl_add_u32 v%d, v%d, %d, v%d" % (vVOFF, vT0, 10 + int(math.log2(U)), vVOFF))
    A("v_readfirstlane_b32 s%d, v%d" % (sWV, vT0))
    C("tree tiles")
    A("s_lshl_b32 s%d, s%d, 8" % (sTMP2, sP))
    A("v_and_b32 v%d, 15, v0" % vT1)
    A("v_lshlrev_b32 v%d, 4, v%d" % (vT1, vT1))
    A("buffer_load_dwordx4 v[%d:%d], v%d, s[%d:%d], s%d offen" % (vKT, vKT + 3, vT2, sKT, sKT + 3, sTMP2))
    issued.append("kt")
    A("buffer_load_dwordx4 v[%d:%d], v%d, s[%d:%d], s%d offen" % (vVT, vVT + 3, vT1, sVT, sVT + 3, sTMP2))
    issued.append("vt")
    A("s_mov_b32 s%d, %s" % (sC, f32hex(cscale)))
    C("LDS address for stats: h*NW*4 + w*4 (h=(l>>3)&1)")
    A("v_bfe_u32 v%d, v0, 3, 1" % vT1)
    A("v_lshlrev_b32 v%d, %d, v%d" % (vT1, int(math.log2(NW * 4)), vT1))
    A("v_lshl_add_u32 v%d, v%d, 2, v%d" % (vLDSA, vT0, vT1))
    C("AND masks: reg r: (l%8)==2r -> 0xffff ; (l%8)==2r+1 -> 0xffff0000 ; else 0")
    A("v_and_b32 v%d, 1, v0" % vT0)
    A("v_lshlrev_b32 v%d, 4, v%d" % (vT0, vT0))
    A("v_mov_b32 v%d, 0xffff" % vT1)
    A("v_lshlrev_b32 v%d, v%d, v%d" % (vT1, vT0, vT1))
    A("v_bfe_u32 v%d, v0, 1, 2" % vT0)
    for r in range(4):
        A("v_cmp_eq_u32 vcc, %d, v%d" % (r, vT0))
        A("s_nop 1")
        A("v_cndmask_b32 v%d, 0, v%d, vcc" % (vMASK + r, vT1))
    for i in range(4):
        A("v_mov_b32 v%d, 0" % (vACC + i))
    A("s_waitcnt lgkmcnt(0)")
    C("tree bias (raw score units): (1-mask)*(-1e9)/scale for tid<16 of split 0, else -inf")
    A("s_and_b32 s%d, s%d, 16" % (sTMP, sP))
    A("s_lshr_b32 s%d, s%d, s%d" % (sMASK, sMASK, sTMP))
    A("s_lshl_b32 s%d, s%d, 16" % (sMASK, sMASK))
    A("v_mov_b32 v%d, s%d" % (vBIAS, sMASK))
    A("v_sub_f32 v%d, 1.0, v%d" % (vBIAS, vBIAS))
    A("v_mul_f32 v%d, %s, v%d" % (vBIAS, f32hex(-1e9 * math.sqrt(128.0)), vBIAS))
    A("s_cmp_eq_u32 s%d, 0" % sS)
    A("s_cselect_b32 s%d, 16, 0" % sTMP)
    A("v_mov_b32 v%d, 0xff800000" % vT0)
    A("v_cmp_gt_u32 vcc, s%d, v0" % sTMP)
    A("s_nop 1")
    A("v_cndmask_b32 v%d, v%d, v%d, vcc" % (vBIAS, vT0, vBIAS))

    def dppsum(dst, d):
        A("v_mov_b32_dpp v%d, v%d quad_perm:[0,0,0,0] row_mask:0xf bank_mask:0xf" % (dst, d))
        A("v_add_f32_dpp v%d, v%d, v%d quad_perm:[1,1,1,1] row_mask:0xf bank_mask:0xf" % (dst, d + 1, dst))
        A("v_add_f32_dpp v%d, v%d, v%d quad_perm:[2,2,2,2] row_mask:0xf bank_mask:0xf" % (dst, d + 2, dst))
        A("v_add_f32_dpp v%d, v%d, v%d quad_perm:[3,3,3,3] row_mask:0xf bank_mask:0xf" % (dst, d + 3, dst))

    C("---- QK phase")
    pend = []
    done_s = []
    first_max = [True]
    def fold_max():
        while len(done_s) >= 2:
            a, b = done_s.pop(0), done_s.pop(0)
            if first_max[0]:
                A("v_max_f32 v%d, v%d, v%d" % (vM, a, b)); first_max[0] = False
            else:
                A("v_max3_f32 v%d, v%d, v%d, v%d" % (vM, vM, a, b))
    tree_pos = min(T - 1, R + 1)
    seq = []
    for i in range(T):
        seq.append(("k", i))
        if i == tree_pos: seq.append(("tree", T))
    for n, (kind, i) in enumerate(seq):
        d = vD[n % 4]
        if kind == "tree":
            A("v_mfma_f32_16x16x32_bf16 v[%d:%d], v[%d:%d], v[%d:%d], 0" % (d, d + 3, vKT, vKT + 3, vQ, vQ + 3))
            mpos = cnt[0]
        else:
            waitfor(i)
            if i == 0: stamp(2)
            r = slot(i)
            A("v_mfma_f32_16x16x32_bf16 v[%d:%d], v[%d:%d], v[%d:%d], 0" % (d, d + 3, r, r + 3, vQ, vQ + 3))
            mpos = cnt[0]
            if i + R < 2 * T:
                issue(i + R)
        pend.append((SREG + i, d, mpos))
        if len(pend) > 2:
            dst, dd, pos = pend.pop(0)
            pad_since(pos, 8)
            dppsum(dst, dd)
            if dst == SREG + T:
                A("v_add_f32 v%d, v%d, v%d" % (dst, dst, vBIAS))
            done_s.append(dst)
            fold_max()
    assert issued.index("vt") < issued.index(tree_pos)
    for dst, dd, pos in pend:
        pad_since(pos, 8)
        dppsum(dst, dd)
        assert dst != SREG + T
        done_s.append(dst)
    fold_max()
    if done_s:
        A("v_max_f32 v%d, v%d, v%d" % (vM, vM, done_s.pop()))
    C("---- max")
    stamp(3)
    def xrow(op, v):
        A("v_mov_b32 v%d, v%d" % (vT0, v))
        A("s_nop 1")
        A("v_permlane16_swap_b32 v%d, v%d" % (v, vT0))
        A("s_nop 1")
        A("%s v%d, v%d, v%d" % (op, v, v, vT0))
        A("v_mov_b32 v%d, v%d" % (vT0, v))
        A("s_nop 1")
        A("v_permlane32_swap_b32 v%d, v%d" % (v, vT0))
        A("s_nop 1")
        A("%s v%d, v%d, v%d" % (op, v, v, vT0))
    xrow("v_max_f32", vM)
    A("ds_write_b32 v%d, v%d offset:%d" % (vLDSA, vM, OFF_M))
    A("v_bfe_u32 v%d, v0, 3, 1" % vT1)
    A("v_lshlrev_b32 v%d, %d, v%d" % (vT1, int(math.log2(NW * 4)), vT1))
    A("s_waitcnt lgkmcnt(0)")
    A("s_barrier")
    nq = NW // 4
    for q in range(nq):
        A("ds_read_b128 v[%d:%d], v%d offset:%d" % (vD[q], vD[q] + 3, vT1, OFF_M + 16 * q))
    A("s_waitcnt lgkmcnt(0)")
    regs = [vD[q] + i for q in range(nq) for i in range(4)]
    for k in range(0, len(regs), 2):
        A("v_max3_f32 v%d, v%d, v%d, v%d" % (vM, vM, regs[k], regs[k + 1]))
    A("v_mul_f32 v%d, s%d, v%d" % (vM, sC, vM))
    A("v_sub_f32 v%d, 0, v%d" % (vNMC, vM))
    C("---- exp (software-pipelined into the PV loop)")
    def expo(i):
        A("v_fma_f32 v%d, v%d, s%d, v%d" % (SREG + i, SREG + i, sC, vNMC))
        A("v_exp_f32 v%d, v%d" % (SREG + i, SREG + i))
    lfirst = [True]
    def fin(i):
        if lfirst[0]:
            A("v_mov_b32 v%d, v%d" % (vL, SREG + i)); lfirst[0] = False
        else:
            A("v_add_f32 v%d, v%d, v%d" % (vL, vL, SREG + i))
        A("v_cvt_pk_bf16_f32 v%d, v%d, v%d" % (SREG + i, SREG + i, SREG + i))
    def expand(i, n):
        p = vD[n % 4]
        for r in range(4):
            A("v_and_b32 v%d, v%d, v%d" % (p + r, SREG + i, vMASK + r))
    seq = [("tree", T)] + [("v", i) for i in range(T)]
    NS = len(seq)
    e_next = [0]; f_next = [0]
    def run_exp(k):
        for _ in range(k):
            if e_next[0] < NS:
                expo(seq[e_next[0]][1]); e_next[0] += 1
    def run_fin(upto):
        while f_next[0] < min(upto, NS):
            fin(seq[f_next[0]][1]); f_next[0] += 1
    run_exp(4)
    run_fin(3)
    expand(seq[0][1], 0)
    expand(seq[1][1], 1)
    l_done = [False]
    for n, (kind, i) in enumerate(seq):
        p = vD[n % 4]
        if kind == "tree":
            r = vVT
        else:
            waitfor(T + i)
            r = slot(T + i)
        A("v_mfma_f32_16x16x32_bf16 v[%d:%d], v[%d:%d], v[%d:%d], v[%d:%d]" % (vACC, vACC + 3, p, p + 3, r, r + 3, vACC, vACC + 3))
        mpos = cnt[0]
        if kind != "tree" and T + i + R < 2 * T:
            issue(T + i + R)
        had = e_next[0]
        run_exp(2)
        run_fin(had if e_next[0] > had else NS)
        if had == e_next[0] and f_next[0] == NS and not l_done[0]:
            l_done[0] = True
            xrow("v_add_f32", vL)
            A("ds_write_b32 v%d, v%d offset:%d" % (vLDSA, vL, OFF_L))
            C("epilogue addresses")
            A("v_lshlrev_b32 v%d, 4, v0" % vT0)
            A("v_lshlrev_b32 v%d, 4, v%d" % (vT1, vLANE))
            A("v_lshrrev_b32 v%d, 5, v%d" % (vT2, vLANE))
            A("v_lshlrev_b32 v%d, %d, v%d" % (vT2, int(math.log2(NW * 4)), vT2))
            C("M for head h' = lane/32 (scaled): lanes 0 / 8 hold heads 0 / 1")
            A("v_readlane_b32 s%d, v%d, 0" % (sTMP, vM))
            A("v_readlane_b32 s%d, v%d, 8" % (sTMP2, vM))
            A("v_cmp_gt_u32 vcc, 32, v%d" % vLANE)
            A("v_mov_b32 v%d, s%d" % (vKT, sTMP))
            A("v_mov_b32 v%d, s%d" % (vKT + 1, sTMP2))
            A("v_cndmask_b32 v%d, v%d, v%d, vcc" % (vKT + 2, vKT + 1, vKT))
            A("s_mul_i32 s%d, s%d, %d" % (sTMP, sP, NSPLIT * 2048))
            A("s_lshl_b32 s%d, s%d, 11" % (sTMP2, sS))
            A("s_add_u32 s%d, s%d, s%d" % (sTMP2, sTMP2, sTMP))
            A("v_lshlrev_b32 v%d, 3, v%d" % (vKOFF, vLANE))
        if n + 2 < NS:
            assert f_next[0] > n + 2
            expand(seq[n + 2][1], n + 2)
    assert l_done[0]
    C("---- WG reduce")
    stamp(4)
    pad_since(mpos, 8)
    A("ds_write_b128 v%d, v[%d:%d] offset:%d" % (vT0, vACC, vACC + 3, OFF_O))
    A("s_waitcnt lgkmcnt(0)")
    A("s_barrier")
    A("s_cmp_lg_u32 s%d, 0" % sWV)
    A("s_cbranch_scc1 %s" % ("L_dump" if stamps else "L_end"))
    stamp(5)
    B0 = 44
    for w in range(1, NW):
        A("ds_read_b128 v[%d:%d], v%d offset:%d" % (B0 + 4 * w, B0 + 4 * w + 3, vT1, OFF_O + 1024 * w))
    BL = B0 + 4 * NW
    for q in range(nq):
        A("ds_read_b128 v[%d:%d], v%d offset:%d" % (BL + 4 * q, BL + 4 * q + 3, vT2, OFF_L + 16 * q))
    for w in range(1, NW):
        A("s_waitcnt lgkmcnt(%d)" % min(15, (NW - 1 - w) + nq))
        for i in range(4):
            A("v_add_f32 v%d, v%d, v%d" % (vACC + i, vACC + i, B0 + 4 * w + i))
    A("buffer_store_dwordx4 v[%d:%d], v%d, s[%d:%d], s%d offen sc1" % (vACC, vACC + 3, vT1, sWS, sWS + 3, sTMP2))
    A("s_waitcnt lgkmcnt(0)")
    vML = vKT + 2
    A("v_add_f32 v%d, v%d, v%d" % (vML + 1, BL, BL + 1))
    for w in range(2, NW):
        A("v_add_f32 v%d, v%d, v%d" % (vML + 1, vML + 1, BL + w))
    A("buffer_store_dwordx2 v[%d:%d], v%d, s[%d:%d], s%d offen offset:1024 sc1" % (vML, vML + 1, vKOFF, sWS, sWS + 3, sTMP2))
    A("s_lshl_b32 s%d, s%d, 2" % (sTMP2, sP))
    A("v_mov_b32 v10, 1")
    A("v_mov_b32 v11, 0")
    A("s_mov_b64 exec, 1")
    A("s_waitcnt vmcnt(0)")
    A("buffer_atomic_add v10, v11, s[%d:%d], s%d offen %s" % (sDBG, sDBG + 3, sTMP2, aflags))
    A("s_waitcnt vmcnt(0)")
    A("v_readfirstlane_b32 s%d, v10" % sTMP2)
    A("s_mov_b64 exec, -1")
    A("s_nop 3")
    stamp(6)
    A("s_cmp_lg_u32 s%d, %d" % (sTMP2, NSPLIT - 1))
    A("s_cbranch_scc1 %s" % ("L_dump" if stamps else "L_end"))
    C("---- last arriver: combine")
    PO = 48
    PML = PO + 4 * NSPLIT
    for s in range(NSPLIT):
        b = s * 2048
        if b % 4096 == 0 and s > 0:
            A("s_add_u32 s%d, s%d, 4096" % (sTMP, sTMP))
        A("buffer_load_dwordx2 v[%d:%d], v%d, s[%d:%d], s%d offen offset:%d sc1" % (PML + 2 * s, PML + 2 * s + 1, vKOFF, sWS, sWS + 3, sTMP, b % 4096 + 1024))
        A("buffer_load_dwordx4 v[%d:%d], v%d, s[%d:%d], s%d offen offset:%d sc1" % (PO + 4 * s, PO + 4 * s + 3, vT1, sWS, sWS + 3, sTMP, b % 4096))
    C("out byte offset: p*512 + h'*256 + (l%16)*16 + ((l>>4)&1)*8")
    A("v_lshrrev_b32 v12, 5, v%d" % vLANE)
    A("v_lshlrev_b32 v12, 8, v12")
    A("v_and_b32 v13, 15, v%d" % vLANE)
    A("v_lshl_add_u32 v12, v13, 4, v12")
    A("v_bfe_u32 v13, v%d, 4, 1" % vLANE)
    A("v_lshl_add_u32 v12, v13, 3, v12")
    A("s_lshl_b32 s%d, s%d, 9" % (sTMP2, sP))
    A("s_waitcnt vmcnt(0)")
    A("v_max3_f32 v8, v%d, v%d, v%d" % (PML, PML + 2, PML + 4))
    A("v_max3_f32 v9, v%d, v%d, v%d" % (PML + 6, PML + 8, PML + 10))
    A("v_max3_f32 v8, v8, v%d, v%d" % (PML + 12, PML + 14))
    A("v_max_f32 v8, v8, v9")
    for s in range(NSPLIT):
        A("v_sub_f32 v%d, v%d, v8" % (PML + 2 * s, PML + 2 * s))
        A("v_exp_f32 v%d, v%d" % (PML + 2 * s, PML + 2 * s))
    A("v_mul_f32 v9, v%d, v%d" % (PML, PML + 1))
    for s in range(1, NSPLIT):
        A("v_fmac_f32 v9, v%d, v%d" % (PML + 2 * s, PML + 2 * s + 1))
    A("v_rcp_f32 v9, v9")
    for i in range(4):
        A("v_mul_f32 v%d, v%d, v%d" % (16 + i, PML, PO + i))
    for s in range(1, NSPLIT):
        for i in range(4):
            A("v_fmac_f32 v%d, v%d, v%d" % (16 + i, PML + 2 * s, PO + 4 * s + i))
    for i in range(4):
        A("v_mul_f32 v%d, v%d, v9" % (16 + i, 16 + i))
    A("v_cvt_pk_bf16_f32 v16, v16, v17")
    A("v_cvt_pk_bf16_f32 v17, v18, v19")
    A("buffer_store_dwordx2 v[16:17], v12, s[%d:%d], s%d offen" % (sOUT, sOUT + 3, sTMP2))
    if stamps:
        A("s_waitcnt vmcnt(0)")
        stamp(7)
        LBL("L_dump")
        A("s_waitcnt vmcnt(0) lgkmcnt(0)")
        A("s_mov_b64 exec, 1")
        A("s_mov_b32 s%d, 0x10000000" % (sWS + 2))
        A("s_lshl_b32 s%d, s2, %d" % (sTMP, int(math.log2(NW)) + 6))
        A("s_lshl_b32 s%d, s%d, 6" % (sTMP2, sWV))
        A("s_add_u32 s%d, s%d, s%d" % (sTMP, sTMP, sTMP2))
        A("s_add_u32 s%d, s%d, 0x1000000" % (sTMP, sTMP))
        A("v_mov_b32 v11, 0")
        for k in range(4):
            for i in range(4):
                A("v_mov_b32 v%d, s%d" % (12 + i, sST + 4 * k + i))
            A("buffer_store_dwordx4 v[12:15], v11, s[%d:%d], s%d offen offset:%d" % (sWS, sWS + 3, sTMP, 16 * k))
            A("s_nop 2")
    LBL("L_end")
    A("s_endpgm")

    out = HEADER
    out += "; @launch grid=(%d,1,1) block=(%d,1,1) lds=%d\n" % (NWG, NW * 64, LDS)
    out += '.amdgcn_target "amdgcn-amd-amdhsa--gfx950"\n.text\n'
    out += ".globl %s_kernel\n.p2align 8\n.type %s_kernel,@function\n%s_kernel:\n" % (NAME, NAME, NAME)
    out += "\n".join(L) + "\n"
    out += '.section .rodata,"a"\n.p2align 6\n.amdhsa_kernel %s_kernel\n' % NAME
    out += "  .amdhsa_next_free_vgpr %d\n  .amdhsa_next_free_sgpr %d\n  .amdhsa_accum_offset %d\n" % (total_v, 96 if stamps else 56, total_v)
    out += "  .amdhsa_group_segment_fixed_size 0\n  .amdhsa_kernarg_size 72\n  .amdhsa_user_sgpr_count 2\n"
    out += "  .amdhsa_user_sgpr_kernarg_segment_ptr 1\n  .amdhsa_system_sgpr_workgroup_id_x 1\n"
    out += "  .amdhsa_float_denorm_mode_32 3\n"
    out += ".end_amdhsa_kernel\n"
    return out

if __name__ == "__main__":
    names = []
    for spec in sys.argv[1:]:
        kw = {}
        main = False
        for kv in spec.split(","):
            if kv == "MAIN": main = True; continue
            k, v = kv.split("=")
            kw[k] = int(v) if v.lstrip("-").isdigit() else v.replace("+", " ")
        n = "var/g2_" + spec.replace(",", "_").replace("=", "").replace("+", "") + ".s"
        if main: n = "cdna_kernels/%s.s" % NAME
        open("code/" + n, "w").write(gen(**kw))
        names.append(n)
    print(" ".join(names))
    print(str(["bench/bench.py", "bench/flush.s", "cdna_kernels/cdna_launch.py", "cdna_kernels/cdna_unwritten_srd_check.py"] + names).replace("'", '"'))
    print(str(names).replace("'", '"'))
```

```python
import sys, math, struct

NAME = "standalone__tree_speculative_verify_tree_attention_over_candidate_token_tree__decode"

HEADER = """; Kernarg layout for this problem (72 bytes, ptrs only, base s[0:1]):
;   offset   0: d_in[0] q  shape=(2, 32, 1, 128) dtype=bfloat16 strides=(8192, 256, 256, 2) contiguous=True
;   offset   8: d_in[1] k_cache  shape=(2, 16, 8192, 128) dtype=bfloat16 strides=(33554432, 2097152, 256, 2) contiguous=True
;   offset  16: d_in[2] v_cache  shape=(2, 16, 8192, 128) dtype=bfloat16 strides=(33554432, 2097152, 256, 2) contiguous=True
;   offset  24: d_in[3] k_tree  shape=(2, 16, 1, 128) dtype=bfloat16 strides=(4096, 256, 256, 2) contiguous=True
;   offset  32: d_in[4] v_tree  shape=(2, 16, 1, 128) dtype=bfloat16 strides=(4096, 256, 256, 2) contiguous=True
;   offset  40: d_in[5] tree_mask  shape=(2, 1, 1) dtype=bfloat16 strides=(2, 2, 2) contiguous=True
;   offset  64: d_ws      268435456 bytes workspace (unspecified values whenever your kernel or launch list starts; a list's later launches find what earlier ones wrote)
"""

def f32hex(x):
    return "0x%08x" % struct.unpack("<I", struct.pack("<f", x))[0]

def gen(NW=4, R=24, U=1, cflag="nt", wgmap="sm", stamps=0, lds_extra=0, KT=8, pst="sc1", pld="sc1", ost="", epat=8, st2=0, qpos=0, konly=0, dryend=0, dryat=-1, drywave=3, warm="", only=-1):
    touch = ""; tpos = 0
    NSPLIT = 8
    NWG = 32 * NSPLIT
    T = 8192 // NSPLIT // NW // 4
    L = []
    cnt = [0]
    def A(s):
        L.append("    " + s)
        m = s.split()
        cnt[0] += (int(m[1]) + 1) if m[0] == "s_nop" else 1
    def pad_since(pos, need):
        have = cnt[0] - pos
        if have < need:
            A("s_nop %d" % (need - have - 1))
    def C(s): L.append("    ; " + s)
    def LBL(s): L.append(s + ":")

    vKOFF, vVOFF = 1, 2
    vT0, vT1, vT2 = 3, 36, 37
    vQ = 4
    vD = [8, 12, 16, 20]
    vKT, vVT = 24, 28
    vMASK = 32
    vBIAS, vL, vACC, vLANE, vLDSA, vM, vNMC = 38, 39, 40, 44, 45, 46, 47
    vG, vL16, vTK, vEP = 48, 56, 57, 38
    vCLR = vEP
    SREG = 58
    RING = (SREG + T + 1 + 3) // 4 * 4
    total_v = (RING + 4 * R + 7) // 8 * 8
    assert total_v <= 256

    OFF_M, OFF_L, OFF_O = 0, 128, 256
    LDS = OFF_O + NW * 1024 + lds_extra
    cscale = (128 ** -0.5) * math.log2(math.e)

    sK, sV, sQ, sKT, sVT, sOUT, sDBG, sWS = 4, 8, 12, 16, 20, 24, 28, 32
    sMP = 36
    sP, sS, sWV, sMASK, sC, sTMP, sTMP2, sKO, sVO = 40, 41, 42, 43, 44, 45, 46, 47, 48
    sSLOT = 50
    sDB, sTAG, sIT, sEPO = 58, 59, 60, 61
    sST = 64
    def stamp(k):
        if stamps:
            A("s_memrealtime s[%d:%d]" % (sST + 2 * k, sST + 2 * k + 1))

    if stamps:
        for k in range(16):
            A("s_mov_b32 s%d, 0" % (sST + k))
        stamp(0)
    A("s_load_dwordx2 s[%d:%d], s[0:1], 8" % (sK, sK + 1))
    def restptrs():
        A("s_load_dwordx2 s[%d:%d], s[0:1], 0" % (sQ, sQ + 1))
        A("s_load_dwordx2 s[%d:%d], s[0:1], 16" % (sV, sV + 1))
        A("s_load_dwordx2 s[%d:%d], s[0:1], 24" % (sKT, sKT + 1))
        A("s_load_dwordx2 s[%d:%d], s[0:1], 32" % (sVT, sVT + 1))
        A("s_load_dwordx2 s[%d:%d], s[0:1], 40" % (sMP, sMP + 1))
    if not konly: restptrs()
    else: assert qpos > 0
    if touch:
        A("s_load_dwordx2 s[%d:%d], s[0:1], 48" % (sOUT, sOUT + 1))
        A("s_load_dwordx2 s[%d:%d], s[0:1], 56" % (sDBG, sDBG + 1))
        A("s_load_dwordx2 s[%d:%d], s[0:1], 64" % (sWS, sWS + 1))
    A("s_cmp_ge_u32 s2, %d" % NWG)
    A("s_cbranch_scc1 L_end")
    if wgmap == "pm":
        A("s_lshr_b32 s%d, s2, 3" % sP)
        A("s_and_b32 s%d, s2, 7" % sS)
        A("s_lshl_b32 s%d, s2, 18" % sKO)
    else:
        A("s_and_b32 s%d, s2, 31" % sP)
        A("s_lshr_b32 s%d, s2, 5" % sS)
        A("s_lshl_b32 s%d, s%d, 21" % (sKO, sP))
        A("s_lshl_b32 s%d, s%d, 18" % (sTMP, sS))
        A("s_add_u32 s%d, s%d, s%d" % (sKO, sKO, sTMP))
    C("K lane offset: w*U*1024 + ((l%16)/4)*256 + (l%4)*16 + (l/16)*64")
    A("v_and_b32 v%d, 3, v0" % vT2)
    A("v_bfe_u32 v%d, v0, 4, 2" % vT1)
    A("v_lshlrev_b32 v%d, 6, v%d" % (vT1, vT1))
    A("v_lshl_add_u32 v%d, v%d, 4, v%d" % (vT2, vT2, vT1))
    A("v_bfe_u32 v%d, v0, 2, 2" % vT1)
    A("v_lshl_add_u32 v%d, v%d, 8, v%d" % (vKOFF, vT1, vT2))
    A("v_lshrrev_b32 v%d, 6, v0" % vT0)
    A("v_lshl_add_u32 v%d, v%d, %d, v%d" % (vKOFF, vT0, 10 + int(math.log2(U)), vKOFF))
    C("Q lane offset: h*256 + chunk, h = (l>>3)&1 ; soffset p*512")
    A("v_bfe_u32 v%d, v0, 3, 1" % vT1)
    A("v_lshl_add_u32 v%d, v%d, 8, v%d" % (vT1, vT1, vT2))
    A("s_lshl_b32 s%d, s%d, 9" % (sTMP, sP))
    A("s_mov_b32 s%d, 0x4000000" % (sK + 2))
    A("s_mov_b32 s%d, 0x20000" % (sK + 3))
    A("s_movk_i32 s%d, 0x4000" % (sQ + 2))
    A("s_mov_b32 s%d, 0x20000" % (sQ + 3))
    A("s_mov_b32 s%d, s%d" % (sVO, sKO))
    A("s_waitcnt lgkmcnt(0)")
    if st2 == 1: stamp(2)

    issued = []
    def waitfor(tag):
        idx = issued.index(tag)
        n = len(issued) - 1 - idx
        assert n <= 63
        A("s_waitcnt vmcnt(%d)" % n)
    def qload():
        if konly: A("s_waitcnt lgkmcnt(0)")
        A("buffer_load_dwordx4 v[%d:%d], v%d, s[%d:%d], s%d offen" % (vQ, vQ + 3, vT1, sQ, sQ + 3, sTMP))
        issued.append("q")
    if qpos == 0: qload()

    def slot(j): return RING + 4 * (j % R)
    cur = {0: 0, 1: 0}
    def issue(j):
        isK = j < T
        i = j if isK else j - T
        b = (i // U) * (NW * U * 1024) + (i % U) * 1024
        so = sKO if isK else sVO
        k = 0 if isK else 1
        if b - cur[k] >= 4096:
            adv = (b - cur[k]) // 4096 * 4096
            A("s_add_u32 s%d, s%d, 0x%x" % (so, so, adv))
            cur[k] += adv
        imm = b - cur[k]
        r = slot(j)
        cf = cflag.split(",")[0 if isK else -1]
        A("buffer_load_dwordx4 v[%d:%d], v%d, s[%d:%d], s%d offen%s%s" % (
            r, r + 3, vKOFF if isK else vVOFF, sK if isK else sV, (sK if isK else sV) + 3, so,
            (" offset:%d" % imm) if imm else "", (" " + cf) if cf else ""))
        issued.append(j)

    for j in range(R):
        issue(j)
        if j == 0 and konly: restptrs()
        if j == 0 and st2 == 2:
            A("s_waitcnt vmcnt(0)"); stamp(2)
        if j == qpos - 1: qload()
        if j == tpos - 1 and touch:
            C("first touch of the other buffers (address translation warm-up), values unused")
            for s_, n_ in ((sV, 0x4000000), (sOUT, 16384), (sDBG, 256), (sWS, NWG * 2048 + 4096)):
                A("s_mov_b32 s%d, 0x%x" % (s_ + 2, n_))
                A("s_mov_b32 s%d, 0x20000" % (s_ + 3))
            if "v" in touch:
                A("buffer_load_dword v%d, off, s[%d:%d], s%d nt" % (vCLR, sV, sV + 3, sVO)); issued.append("t")
            if "w" in touch:
                A("s_mov_b32 s%d, 0x%x" % (sIT, NWG * 2048)); A("buffer_load_dword v%d, off, s[%d:%d], s%d" % (vCLR, sWS, sWS + 3, sIT)); issued.append("t")
            if "d" in touch:
                A("buffer_load_dword v%d, off, s[%d:%d], 0 sc1" % (vCLR, sDBG, sDBG + 3)); issued.append("t")
            if "o" in touch:
                A("buffer_load_dword v%d, off, s[%d:%d], 0" % (vCLR, sOUT, sOUT + 3)); issued.append("t")

    C("remaining setup while loads fly")
    A("s_load_dword s%d, s[%d:%d], 0" % (sMASK, sMP, sMP + 1))
    if not touch:
        A("s_load_dwordx2 s[%d:%d], s[0:1], 48" % (sOUT, sOUT + 1))
        A("s_load_dwordx2 s[%d:%d], s[0:1], 56" % (sDBG, sDBG + 1))
        A("s_load_dwordx2 s[%d:%d], s[0:1], 64" % (sWS, sWS + 1))
    for s, n in ((sV, 0x4000000), (sKT, 8192), (sVT, 8192), (sOUT, 16384), (sDBG, 256), (sWS, NWG * 2048 + 4096)):
        A("s_mov_b32 s%d, 0x%x" % (s + 2, n))
        A("s_mov_b32 s%d, 0x20000" % (s + 3))
    if stamps:
        A("s_getreg_b32 s%d, hwreg(HW_REG_XCC_ID)" % (sST + 2))
        A("s_getreg_b32 s%d, hwreg(HW_REG_HW_ID)" % (sST + 3))
    A("v_and_b32 v%d, 63, v0" % vLANE)
    A("v_lshlrev_b32 v%d, 4, v%d" % (vVOFF, vLANE))
    A("v_lshl_add_u32 v%d, v%d, %d, v%d" % (vVOFF, vT0, 10 + int(math.log2(U)), vVOFF))
    A("v_readfirstlane_b32 s%d, v%d" % (sWV, vT0))
    C("tree tiles")
    A("s_lshl_b32 s%d, s%d, 8" % (sTMP2, sP))
    A("v_and_b32 v%d, 15, v0" % vT1)
    A("v_lshlrev_b32 v%d, 4, v%d" % (vT1, vT1))
    A("buffer_load_dwordx4 v[%d:%d], v%d, s[%d:%d], s%d offen" % (vKT, vKT + 3, vT2, sKT, sKT + 3, sTMP2))
    issued.append("kt")
    A("buffer_load_dwordx4 v[%d:%d], v%d, s[%d:%d], s%d offen" % (vVT, vVT + 3, vT1, sVT, sVT + 3, sTMP2))
    issued.append("vt")
    A("s_mov_b32 s%d, %s" % (sC, f32hex(cscale)))
    C("LDS address for stats: h*NW*4 + w*4 (h=(l>>3)&1)")
    A("v_bfe_u32 v%d, v0, 3, 1" % vT1)
    A("v_lshlrev_b32 v%d, %d, v%d" % (vT1, int(math.log2(NW * 4)), vT1))
    A("v_lshl_add_u32 v%d, v%d, 2, v%d" % (vLDSA, vT0, vT1))
    C("AND masks: reg r: (l%8)==2r -> 0xffff ; (l%8)==2r+1 -> 0xffff0000 ; else 0")
    A("v_and_b32 v%d, 1, v0" % vT0)
    A("v_lshlrev_b32 v%d, 4, v%d" % (vT0, vT0))
    A("v_mov_b32 v%d, 0xffff" % vT1)
    A("v_lshlrev_b32 v%d, v%d, v%d" % (vT1, vT0, vT1))
    A("v_bfe_u32 v%d, v0, 1, 2" % vT0)
    for r in range(4):
        A("v_cmp_eq_u32 vcc, %d, v%d" % (r, vT0))
        A("s_nop 1")
        A("v_cndmask_b32 v%d, 0, v%d, vcc" % (vMASK + r, vT1))
    for i in range(4):
        A("v_mov_b32 v%d, 0" % (vACC + i))
    A("v_lshlrev_b32 v%d, 4, v%d" % (vL16, vLANE))
    A("v_mov_b32 v%d, 1" % vTK)
    A("s_lshl_b32 s%d, s%d, 14" % (sTMP, sP))
    for i in range(8):
        A("s_xor_b32 s%d, s%d, %d" % (sSLOT + i, sS, i))
        A("s_lshl_b32 s%d, s%d, 11" % (sSLOT + i, sSLOT + i))
        A("s_add_u32 s%d, s%d, s%d" % (sSLOT + i, sSLOT + i, sTMP))
    A("s_lshl_b32 s%d, s%d, 3" % (sDB, sP))
    A("s_lshl_b32 s%d, s%d, 7" % (sEPO, sP))
    A("s_add_u32 s%d, s%d, 0x%x" % (sEPO, sEPO, NWG * 2048))
    A("s_waitcnt lgkmcnt(0)")
    C("tree bias (raw score units): (1-mask)*(-1e9)/scale for tid<16 of split 0, else -inf")
    A("s_and_b32 s%d, s%d, 16" % (sTMP, sP))
    A("s_lshr_b32 s%d, s%d, s%d" % (sMASK, sMASK, sTMP))
    A("s_lshl_b32 s%d, s%d, 16" % (sMASK, sMASK))
    A("v_mov_b32 v%d, s%d" % (vBIAS, sMASK))
    A("v_sub_f32 v%d, 1.0, v%d" % (vBIAS, vBIAS))
    A("v_mul_f32 v%d, %s, v%d" % (vBIAS, f32hex(-1e9 * math.sqrt(128.0)), vBIAS))
    A("s_cmp_eq_u32 s%d, 0" % sS)
    A("s_cselect_b32 s%d, 16, 0" % sTMP)
    A("v_mov_b32 v%d, 0xff800000" % vT0)
    A("v_cmp_gt_u32 vcc, s%d, v0" % sTMP)
    A("s_nop 1")
    A("v_cndmask_b32 v%d, v%d, v%d, vcc" % (vBIAS, vT0, vBIAS))

    def dppsum(dst, d):
        A("v_mov_b32_dpp v%d, v%d quad_perm:[0,0,0,0] row_mask:0xf bank_mask:0xf" % (dst, d))
        A("v_add_f32_dpp v%d, v%d, v%d quad_perm:[1,1,1,1] row_mask:0xf bank_mask:0xf" % (dst, d + 1, dst))
        A("v_add_f32_dpp v%d, v%d, v%d quad_perm:[2,2,2,2] row_mask:0xf bank_mask:0xf" % (dst, d + 2, dst))
        A("v_add_f32_dpp v%d, v%d, v%d quad_perm:[3,3,3,3] row_mask:0xf bank_mask:0xf" % (dst, d + 3, dst))

    if only >= 0:
        A("s_and_b32 s%d, s2, 7" % sTMP)
        A("s_lshr_b32 s%d, 0x%x, s%d" % (sTMP, only, sTMP))
        A("s_bitcmp0_b32 s%d, 0" % sTMP)
        A("s_cbranch_scc1 L_dump")
    C("---- QK phase")
    pend = []
    done_s = []
    first_max = [True]
    def fold_max():
        while len(done_s) >= 2:
            a, b = done_s.pop(0), done_s.pop(0)
            if first_max[0]:
                A("v_max_f32 v%d, v%d, v%d" % (vM, a, b)); first_max[0] = False
            else:
                A("v_max3_f32 v%d, v%d, v%d, v%d" % (vM, vM, a, b))
    tree_pos = min(T - 1, R + 1)
    seq = []
    for i in range(T):
        seq.append(("k", i))
        if i == tree_pos: seq.append(("tree", T))
    for n, (kind, i) in enumerate(seq):
        d = vD[n % 4]
        if kind == "tree":
            A("v_mfma_f32_16x16x32_bf16 v[%d:%d], v[%d:%d], v[%d:%d], 0" % (d, d + 3, vKT, vKT + 3, vQ, vQ + 3))
            mpos = cnt[0]
        else:
            if i == 0 and qpos > 0: waitfor("q")
            else: waitfor(i)
            if i == 0 and st2 == 0: stamp(2)
            r = slot(i)
            A("v_mfma_f32_16x16x32_bf16 v[%d:%d], v[%d:%d], v[%d:%d], 0" % (d, d + 3, r, r + 3, vQ, vQ + 3))
            mpos = cnt[0]
            if i + R < 2 * T:
                issue(i + R)
            if i == dryat:
                C("one wave walks the gather/combine arithmetic with no lanes active (instruction fetch warm-up)")
                A("s_cmp_lg_u32 s%d, %d" % (sWV, drywave))
                A("s_cbranch_scc1 L_dry_back")
                A("s_mov_b64 exec, 0")
                A("s_mov_b64 vcc, 0")
                A("s_mov_b32 s%d, 1" % sIT)
                A("s_branch L_check")
                LBL("L_dry_back")
                A("s_mov_b64 exec, -1")
                A("s_nop 4")
        pend.append((SREG + i, d, mpos))
        if len(pend) > 2:
            dst, dd, pos = pend.pop(0)
            pad_since(pos, 8)
            dppsum(dst, dd)
            if dst == SREG + T:
                A("v_add_f32 v%d, v%d, v%d" % (dst, dst, vBIAS))
            done_s.append(dst)
            fold_max()
    assert issued.index("vt") < issued.index(tree_pos)
    for dst, dd, pos in pend:
        pad_since(pos, 8)
        dppsum(dst, dd)
        assert dst != SREG + T
        done_s.append(dst)
    fold_max()
    if done_s:
        A("v_max_f32 v%d, v%d, v%d" % (vM, vM, done_s.pop()))
    C("---- max")
    stamp(3)
    def xrow(op, v):
        A("v_mov_b32 v%d, v%d" % (vT0, v))
        A("s_nop 1")
        A("v_permlane16_swap_b32 v%d, v%d" % (v, vT0))
        A("s_nop 1")
        A("%s v%d, v%d, v%d" % (op, v, v, vT0))
        A("v_mov_b32 v%d, v%d" % (vT0, v))
        A("s_nop 1")
        A("v_permlane32_swap_b32 v%d, v%d" % (v, vT0))
        A("s_nop 1")
        A("%s v%d, v%d, v%d" % (op, v, v, vT0))
    xrow("v_max_f32", vM)
    A("ds_write_b32 v%d, v%d offset:%d" % (vLDSA, vM, OFF_M))
    A("v_bfe_u32 v%d, v0, 3, 1" % vT1)
    A("v_lshlrev_b32 v%d, %d, v%d" % (vT1, int(math.log2(NW * 4)), vT1))
    A("s_waitcnt lgkmcnt(0)")
    A("s_barrier")
    nq = NW // 4
    for q in range(nq):
        A("ds_read_b128 v[%d:%d], v%d offset:%d" % (vD[q], vD[q] + 3, vT1, OFF_M + 16 * q))
    A("s_waitcnt lgkmcnt(0)")
    regs = [vD[q] + i for q in range(nq) for i in range(4)]
    for k in range(0, len(regs), 2):
        A("v_max3_f32 v%d, v%d, v%d, v%d" % (vM, vM, regs[k], regs[k + 1]))
    A("v_mul_f32 v%d, s%d, v%d" % (vM, sC, vM))
    A("v_sub_f32 v%d, 0, v%d" % (vNMC, vM))
    C("---- exp (software-pipelined into the PV loop)")
    def expo(i):
        A("v_fma_f32 v%d, v%d, s%d, v%d" % (SREG + i, SREG + i, sC, vNMC))
        A("v_exp_f32 v%d, v%d" % (SREG + i, SREG + i))
    lfirst = [True]
    def fin(i):
        if lfirst[0]:
            A("v_mov_b32 v%d, v%d" % (vL, SREG + i)); lfirst[0] = False
        else:
            A("v_add_f32 v%d, v%d, v%d" % (vL, vL, SREG + i))
        A("v_cvt_pk_bf16_f32 v%d, v%d, v%d" % (SREG + i, SREG + i, SREG + i))
    def expand(i, n):
        p = vD[n % 4]
        for r in range(4):
            A("v_and_b32 v%d, v%d, v%d" % (p + r, SREG + i, vMASK + r))
    seq = [("tree", T)] + [("v", i) for i in range(T)]
    NS = len(seq)
    e_next = [0]; f_next = [0]
    def run_exp(k):
        for _ in range(k):
            if e_next[0] < NS:
                expo(seq[e_next[0]][1]); e_next[0] += 1
    def run_fin(upto):
        while f_next[0] < min(upto, NS):
            fin(seq[f_next[0]][1]); f_next[0] += 1
    run_exp(4)
    run_fin(3)
    expand(seq[0][1], 0)
    expand(seq[1][1], 1)
    l_done = [False]
    vOA = vKT
    SETB = RING
    assert 56 <= 4 * R
    def polls(SET):
        for i in range(1, 8):
            for g in range(2):
                r = SET + 8 * (i - 1) + 4 * g
                A("buffer_load_dwordx4 v[%d:%d], v%d, s[%d:%d], s%d offen%s %s" % (r, r + 3, vL16, sWS, sWS + 3, sSLOT + i, " offset:1024" if g else "", pld))
    mp = [0]
    def pvstep(n):
        kind, i = seq[n]
        p = vD[n % 4]
        if kind == "tree":
            r = vVT
        else:
            waitfor(T + i)
            r = slot(T + i)
        A("v_mfma_f32_16x16x32_bf16 v[%d:%d], v[%d:%d], v[%d:%d], v[%d:%d]" % (vACC, vACC + 3, p, p + 3, r, r + 3, vACC, vACC + 3))
        mp[0] = cnt[0]
        if kind != "tree" and T + i + R < 2 * T:
            issue(T + i + R)
        if n == epat:
            C("wave 0: hand-off generation word of this pair (tells this launch's records from older ones)")
            A("s_cmp_lg_u32 s%d, 0" % sWV)
            A("s_cbranch_scc1 L_skip_ep")
            A("buffer_load_dword v%d, off, s[%d:%d], s%d sc1" % (vEP, sWS, sWS + 3, sEPO))
            if warm.startswith("ld"):
                fl = warm[2:].strip()
                A("buffer_load_dwordx4 v[%d:%d], v%d, s[%d:%d], s%d offen %s" % (vKT, vKT + 3, vL16, sWS, sWS + 3, sSLOT, fl))
                A("buffer_load_dwordx4 v[%d:%d], v%d, s[%d:%d], s%d offen offset:1024 %s" % (vKT, vKT + 3, vL16, sWS, sWS + 3, sSLOT, fl))
            if warm.startswith("st"):
                fl = warm[2:].strip()
                A("buffer_store_dwordx4 v[%d:%d], v%d, s[%d:%d], s%d offen %s" % (vMASK, vMASK + 3, vL16, sWS, sWS + 3, sSLOT, fl))
                A("buffer_store_dwordx4 v[%d:%d], v%d, s[%d:%d], s%d offen offset:1024 %s" % (vMASK, vMASK + 3, vL16, sWS, sWS + 3, sSLOT, fl))
            LBL("L_skip_ep")
            assert n + R + 2 < NS - KT
        had = e_next[0]
        run_exp(2)
        run_fin(had if e_next[0] > had else NS)
        if had == e_next[0] and f_next[0] == NS and not l_done[0]:
            l_done[0] = True
            xrow("v_add_f32", vL)
            A("ds_write_b32 v%d, v%d offset:%d" % (vLDSA, vL, OFF_L))
            C("epilogue addresses")
            A("v_lshlrev_b32 v%d, 4, v0" % vT0)
            A("v_lshrrev_b32 v%d, 5, v%d" % (vT2, vLANE))
            A("v_lshlrev_b32 v%d, 8, v%d" % (vOA, vT2))
            A("v_lshlrev_b32 v%d, %d, v%d" % (vT2, int(math.log2(NW * 4)), vT2))
            C("M for head h' = lane/32 (scaled): lanes 0 / 8 hold heads 0 / 1")
            A("v_readlane_b32 s%d, v%d, 0" % (sTMP, vM))
            A("v_readlane_b32 s%d, v%d, 8" % (sTMP2, vM))
            A("v_cmp_gt_u32 vcc, 32, v%d" % vLANE)
            A("v_mov_b32 v%d, s%d" % (vT1, sTMP))
            A("v_mov_b32 v%d, s%d" % (vG + 6, sTMP2))
            A("v_cndmask_b32 v%d, v%d, v%d, vcc" % (vG + 2, vG + 6, vT1))
            C("out byte offset: p*512 + h'*256 + (l%16)*16 + ((l>>4)&1)*8")
            A("v_and_b32 v%d, 15, v%d" % (vT1, vLANE))
            A("v_lshl_add_u32 v%d, v%d, 4, v%d" % (vOA, vT1, vOA))
            A("v_bfe_u32 v%d, v%d, 4, 1" % (vT1, vLANE))
            A("v_lshl_add_u32 v%d, v%d, 3, v%d" % (vOA, vT1, vOA))
            A("s_lshl_b32 s%d, s%d, 9" % (sTMP2, sP))
        if n + 2 < NS:
            assert f_next[0] > n + 2
            expand(seq[n + 2][1], n + 2)
    for n in range(NS):
        if n == NS - KT:
            assert l_done[0]
            C("wave 0: arrival ticket of this split")
            A("s_cmp_lg_u32 s%d, 0" % sWV)
            A("s_cbranch_scc1 L_skip_tk")
            A("v_readfirstlane_b32 s%d, v%d" % (sTAG, vEP))
            A("s_mov_b64 exec, 1")
            A("buffer_atomic_add v%d, off, s[%d:%d], s%d sc0 sc1" % (vTK, sDBG, sDBG + 3, sDB))
            A("s_mov_b64 exec, -1")
            A("s_mul_i32 s%d, s%d, 0x9e3779b1" % (sTAG, sTAG))
            A("s_add_u32 s%d, s%d, 0x7f4a7c15" % (sTAG, sTAG))
            A("s_movk_i32 s%d, 0x7fff" % sIT)
            A("v_mov_b32 v%d, s%d" % (vG + 3, sTAG))
            A("v_mov_b32 v%d, s%d" % (vG + 7, sTAG))
            LBL("L_skip_tk")
        pvstep(n)
    ENDL = "L_dump" if stamps else "L_end"
    stamp(4)
    A("s_cmp_eq_u32 s%d, 0" % sWV)
    A("s_cbranch_scc1 L_w0")
    C("---- waves 1..3: hand the sums to wave 0")
    pad_since(mp[0], 8)
    A("ds_write_b128 v%d, v[%d:%d] offset:%d" % (vT0, vACC, vACC + 3, OFF_O))
    A("s_waitcnt lgkmcnt(0)")
    A("s_barrier")
    if dryend:
        A("s_mov_b64 exec, 0")
        A("s_mov_b64 vcc, 0")
        A("s_mov_b32 s%d, 0" % sIT)
        A("s_branch L_check")
    elif stamps: A("s_branch L_dump")
    else: A("s_endpgm")
    LBL("L_w0")
    def reduce_own():
        B0 = 4
        for w in range(1, NW):
            A("ds_read_b128 v[%d:%d], v%d offset:%d" % (B0 + 4 * w, B0 + 4 * w + 3, vL16, OFF_O + 1024 * w))
        BL = B0 + 4 * NW
        A("ds_read_b128 v[%d:%d], v%d offset:%d" % (BL, BL + 3, vT2, OFF_L))
        pad_since(mp[0], 8)
        for w in range(1, NW):
            A("s_waitcnt lgkmcnt(%d)" % ((NW - 1 - w) + 1))
            for hh in (0, 2):
                d = vACC + hh if w < NW - 1 else vG + 2 * hh
                A("v_pk_add_f32 v[%d:%d], v[%d:%d], v[%d:%d]" % (d, d + 1, vACC + hh, vACC + hh + 1, B0 + 4 * w + hh, B0 + 4 * w + hh + 1))
        return BL
    def lsum(BL):
        A("s_waitcnt lgkmcnt(0)")
        A("v_pk_add_f32 v[%d:%d], v[%d:%d], v[%d:%d]" % (BL, BL + 1, BL, BL + 1, BL + 2, BL + 3))
        A("v_add_f32 v%d, v%d, v%d" % (vG + 6, BL, BL + 1))
    def publish():
        BL = reduce_own()
        A("buffer_store_dwordx4 v[%d:%d], v%d, s[%d:%d], s%d offen %s" % (vG, vG + 3, vL16, sWS, sWS + 3, sSLOT, pst))
        lsum(BL)
        A("buffer_store_dwordx4 v[%d:%d], v%d, s[%d:%d], s%d offen offset:1024 %s" % (vG + 4, vG + 7, vL16, sWS, sWS + 3, sSLOT, pst))
    def check(SET, lbl):
        for i in range(7):
            A("v_bitop3_b32 v%d, v%d, v%d, s%d bitop3:0x7e" % (8 + i, SET + 8 * i + 3, SET + 8 * i + 7, sTAG))
        A("v_or3_b32 v8, v8, v9, v10")
        A("v_or3_b32 v11, v11, v12, v13")
        A("v_or3_b32 v8, v8, v11, v14")
        A("v_cmp_ne_u32 vcc, 0, v8")
        A("s_cbranch_vccnz L_repoll")
    def combine(SET):
        G = [vG] + [SET + 8 * i for i in range(7)]
        A("v_max3_f32 v8, v%d, v%d, v%d" % (G[0] + 2, G[1] + 2, G[2] + 2))
        A("v_max3_f32 v9, v%d, v%d, v%d" % (G[3] + 2, G[4] + 2, G[5] + 2))
        A("v_max3_f32 v8, v8, v%d, v%d" % (G[6] + 2, G[7] + 2))
        A("v_max_f32 v8, v8, v9")
        for s in range(8):
            A("v_sub_f32 v%d, v%d, v8" % (G[s] + 2, G[s] + 2))
            A("v_exp_f32 v%d, v%d" % (G[s] + 2, G[s] + 2))
        for s in range(8):
            A("v_mul_f32 v%d, v%d, v%d" % (G[s] + 6, G[s] + 2, G[s] + 6))
        for st in (1, 2, 4):
            for s in range(0, 8, 2 * st):
                A("v_add_f32 v%d, v%d, v%d" % (G[s] + 6, G[s] + 6, G[s + st] + 6))
        A("v_rcp_f32 v8, v%d" % (G[0] + 6))
        for s in range(8):
            for hh in (0, 4):
                A("v_pk_mul_f32 v[%d:%d], v[%d:%d], v[%d:%d] op_sel_hi:[1,0]" % (G[s] + hh, G[s] + hh + 1, G[s] + hh, G[s] + hh + 1, G[s] + 2, G[s] + 3))
        for st in (1, 2, 4):
            for s in range(0, 8, 2 * st):
                for hh in (0, 4):
                    A("v_pk_add_f32 v[%d:%d], v[%d:%d], v[%d:%d]" % (G[s] + hh, G[s] + hh + 1, G[s] + hh, G[s] + hh + 1, G[s + st] + hh, G[s + st] + hh + 1))
        A("s_branch L_fin")
    C("only the holder of the last ticket gathers; the others publish")
    A("v_readfirstlane_b32 s%d, v%d" % (sTMP, vTK))
    A("s_cmp_lg_u32 s%d, %d" % (sTMP, NSPLIT - 1))
    A("s_cbranch_scc1 L_nopoll")
    polls(SETB)
    LBL("L_nopoll")
    A("s_barrier")
    stamp(5)
    mp[0] = cnt[0] - 6
    BL = reduce_own()
    A("s_cbranch_scc0 L_last")
    A("buffer_store_dwordx4 v[%d:%d], v%d, s[%d:%d], s%d offen %s" % (vG, vG + 3, vL16, sWS, sWS + 3, sSLOT, pst))
    lsum(BL)
    A("buffer_store_dwordx4 v[%d:%d], v%d, s[%d:%d], s%d offen offset:1024 %s" % (vG + 4, vG + 7, vL16, sWS, sWS + 3, sSLOT, pst))
    stamp(6)
    if stamps: A("s_branch L_dump")
    else: A("s_endpgm")
    LBL("L_last")
    lsum(BL)
    LBL("L_wait")
    A("s_waitcnt vmcnt(0)")
    stamp(6)
    LBL("L_check")
    check(SETB, None)
    LBL("L_comb")
    combine(SETB)
    L.pop()
    A("v_pk_mul_f32 v[%d:%d], v[%d:%d], v[8:9] op_sel_hi:[1,0]" % (vG, vG + 1, vG, vG + 1))
    A("v_pk_mul_f32 v[%d:%d], v[%d:%d], v[8:9] op_sel_hi:[1,0]" % (vG + 4, vG + 5, vG + 4, vG + 5))
    A("v_cvt_pk_bf16_f32 v16, v%d, v%d" % (vG, vG + 1))
    A("v_cvt_pk_bf16_f32 v17, v%d, v%d" % (vG + 4, vG + 5))
    if dryend or dryat >= 0:
        A("s_cbranch_execz L_dryexit")
    A("buffer_store_dwordx2 v[16:17], v%d, s[%d:%d], s%d offen%s" % (vOA, sOUT, sOUT + 3, sTMP2, (" " + ost) if ost else ""))
    C("advance the generation word")
    A("s_mov_b64 exec, 1")
    A("buffer_store_dword v%d, off, s[%d:%d], s%d sc1" % (vG + 7, sWS, sWS + 3, sEPO))
    if stamps:
        A("s_waitcnt vmcnt(0)")
        stamp(7)
        LBL("L_dump")
        A("s_waitcnt vmcnt(0) lgkmcnt(0)")
        A("s_mov_b64 exec, 1")
        A("s_mov_b32 s%d, 0x10000000" % (sWS + 2))
        A("s_lshl_b32 s%d, s2, %d" % (sTMP, int(math.log2(NW)) + 6))
        A("s_lshl_b32 s%d, s%d, 6" % (sTMP2, sWV))
        A("s_add_u32 s%d, s%d, s%d" % (sTMP, sTMP, sTMP2))
        A("s_add_u32 s%d, s%d, 0x1000000" % (sTMP, sTMP))
        A("v_mov_b32 v11, 0")
        for k in range(4):
            for i in range(4):
                A("v_mov_b32 v%d, s%d" % (12 + i, sST + 4 * k + i))
            A("buffer_store_dwordx4 v[12:15], v11, s[%d:%d], s%d offen offset:%d" % (sWS, sWS + 3, sTMP, 16 * k))
            A("s_nop 2")
    LBL("L_end")
    A("s_endpgm")
    LBL("L_repoll")
    polls(SETB)
    A("s_sub_u32 s%d, s%d, 1" % (sIT, sIT))
    A("s_cmp_lg_u32 s%d, 0" % sIT)
    A("s_cbranch_scc1 L_wait")
    A("s_waitcnt vmcnt(0)")
    A("s_branch L_comb")
    if dryend or dryat >= 0:
        LBL("L_dryexit")
        if dryat >= 0:
            A("s_cmp_eq_u32 s%d, 1" % sIT)
            A("s_cbranch_scc1 L_dry_back")
        if stamps: A("s_branch L_dump")
        else: A("s_endpgm")

    out = HEADER
    out += "; @launch grid=(%d,1,1) block=(%d,1,1) lds=%d\n" % (NWG, NW * 64, LDS)
    out += '.amdgcn_target "amdgcn-amd-amdhsa--gfx950"\n.text\n'
    out += ".globl %s_kernel\n.p2align 8\n.type %s_kernel,@function\n%s_kernel:\n" % (NAME, NAME, NAME)
    out += "\n".join(L) + "\n"
    out += '.section .rodata,"a"\n.p2align 6\n.amdhsa_kernel %s_kernel\n' % NAME
    out += "  .amdhsa_next_free_vgpr %d\n  .amdhsa_next_free_sgpr %d\n  .amdhsa_accum_offset %d\n" % (total_v, 96 if stamps else 64, total_v)
    out += "  .amdhsa_group_segment_fixed_size 0\n  .amdhsa_kernarg_size 72\n  .amdhsa_user_sgpr_count 2\n"
    out += "  .amdhsa_user_sgpr_kernarg_segment_ptr 1\n  .amdhsa_system_sgpr_workgroup_id_x 1\n"
    out += "  .amdhsa_float_denorm_mode_32 3\n"
    out += ".end_amdhsa_kernel\n"
    return out

if __name__ == "__main__":
    names = []
    for spec in sys.argv[1:]:
        kw = {}
        main = False
        for kv in spec.split(","):
            if kv == "MAIN": main = True; continue
            k, v = kv.split("=")
            kw[k] = int(v) if v.lstrip("-").isdigit() else v.replace("+", " ")
        n = "var/g5_" + spec.replace(",", "_").replace("=", "").replace("+", "") + ".s"
        if main: n = "cdna_kernels/%s.s" % NAME
        open("code/" + n, "w").write(gen(**kw))
        names.append(n)
    print(" ".join(names))
    print(str(["bench/bench.py", "bench/flush.s", "bench/icev.s", "cdna_kernels/cdna_launch.py", "cdna_kernels/cdna_unwritten_srd_check.py"] + names).replace("'", '"'))
    print(str(names).replace("'", '"'))
```

```python
import sys, math, struct

NAME = "standalone__tree_speculative_verify_tree_attention_over_candidate_token_tree__decode"

HEADER = """; Kernarg layout for this problem (72 bytes, ptrs only, base s[0:1]):
;   offset   0: d_in[0] q  shape=(2, 32, 1, 128) dtype=bfloat16 strides=(8192, 256, 256, 2) contiguous=True
;   offset   8: d_in[1] k_cache  shape=(2, 16, 8192, 128) dtype=bfloat16 strides=(33554432, 2097152, 256, 2) contiguous=True
;   offset  16: d_in[2] v_cache  shape=(2, 16, 8192, 128) dtype=bfloat16 strides=(33554432, 2097152, 256, 2) contiguous=True
;   offset  24: d_in[3] k_tree  shape=(2, 16, 1, 128) dtype=bfloat16 strides=(4096, 256, 256, 2) contiguous=True
;   offset  32: d_in[4] v_tree  shape=(2, 16, 1, 128) dtype=bfloat16 strides=(4096, 256, 256, 2) contiguous=True
;   offset  40: d_in[5] tree_mask  shape=(2, 1, 1) dtype=bfloat16 strides=(2, 2, 2) contiguous=True
;   offset  64: d_ws      268435456 bytes workspace (unspecified values whenever your kernel or launch list starts; a list's later launches find what earlier ones wrote)
"""

def f32hex(x):
    return "0x%08x" % struct.unpack("<I", struct.pack("<f", x))[0]

def gen(NW=4, R=24, U=1, cflag="nt", wgmap="sm", stamps=0, lds_extra=0, KT=8, pst="sc1", pld="sc1", ost="", epat=8, st2=0, qpos=0, konly=0, dryend=0, dryat=-1, drywave=3, warm="", only=-1, hst=0, amp=-1, ampk=5):
    touch = ""; tpos = 0
    NSPLIT = 8
    NWG = 32 * NSPLIT
    T = 8192 // NSPLIT // NW // 4
    L = []
    cnt = [0]
    def A(s):
        L.append("    " + s)
        m = s.split()
        cnt[0] += (int(m[1]) + 1) if m[0] == "s_nop" else 1
    def pad_since(pos, need):
        have = cnt[0] - pos
        if have < need:
            A("s_nop %d" % (need - have - 1))
    def C(s): L.append("    ; " + s)
    def LBL(s): L.append(s + ":")

    vKOFF, vVOFF = 1, 2
    vT0, vT1, vT2 = 3, 36, 37
    vQ = 4
    vD = [8, 12, 16, 20]
    vKT, vVT = 24, 28
    vMASK = 32
    vBIAS, vL, vACC, vLANE, vLDSA, vM, vNMC = 38, 39, 40, 44, 45, 46, 47
    vG, vL16, vTK, vEP = 48, 56, 57, 38
    vCLR = vEP
    SREG = 58
    RING = (SREG + T + 1 + 3) // 4 * 4
    total_v = (RING + 4 * R + 7) // 8 * 8
    assert total_v <= 256

    OFF_M, OFF_L, OFF_O = 0, 128, 256
    LDS = OFF_O + NW * 1024 + lds_extra
    cscale = (128 ** -0.5) * math.log2(math.e)

    sK, sV, sQ, sKT, sVT, sOUT, sDBG, sWS = 4, 8, 12, 16, 20, 24, 28, 32
    sMP = 36
    sP, sS, sWV, sMASK, sC, sTMP, sTMP2, sKO, sVO = 40, 41, 42, 43, 44, 45, 46, 47, 48
    sSLOT = 50
    sDB, sTAG, sIT, sEPO = 58, 59, 60, 61
    sST = 64
    def stamp(k):
        if stamps:
            A("s_memrealtime s[%d:%d]" % (sST + 2 * k, sST + 2 * k + 1))

    if stamps:
        for k in range(16):
            A("s_mov_b32 s%d, 0" % (sST + k))
        stamp(0)
    A("s_load_dwordx2 s[%d:%d], s[0:1], 8" % (sK, sK + 1))
    def restptrs():
        A("s_load_dwordx2 s[%d:%d], s[0:1], 0" % (sQ, sQ + 1))
        A("s_load_dwordx2 s[%d:%d], s[0:1], 16" % (sV, sV + 1))
        A("s_load_dwordx2 s[%d:%d], s[0:1], 24" % (sKT, sKT + 1))
        A("s_load_dwordx2 s[%d:%d], s[0:1], 32" % (sVT, sVT + 1))
        A("s_load_dwordx2 s[%d:%d], s[0:1], 40" % (sMP, sMP + 1))
    if not konly: restptrs()
    else: assert qpos > 0
    if touch:
        A("s_load_dwordx2 s[%d:%d], s[0:1], 48" % (sOUT, sOUT + 1))
        A("s_load_dwordx2 s[%d:%d], s[0:1], 56" % (sDBG, sDBG + 1))
        A("s_load_dwordx2 s[%d:%d], s[0:1], 64" % (sWS, sWS + 1))
    A("s_cmp_ge_u32 s2, %d" % NWG)
    A("s_cbranch_scc1 L_end")
    if wgmap == "pm":
        A("s_lshr_b32 s%d, s2, 3" % sP)
        A("s_and_b32 s%d, s2, 7" % sS)
        A("s_lshl_b32 s%d, s2, 18" % sKO)
    else:
        A("s_and_b32 s%d, s2, 31" % sP)
        A("s_lshr_b32 s%d, s2, 5" % sS)
        A("s_lshl_b32 s%d, s%d, 21" % (sKO, sP))
        A("s_lshl_b32 s%d, s%d, 18" % (sTMP, sS))
        A("s_add_u32 s%d, s%d, s%d" % (sKO, sKO, sTMP))
    C("K lane offset: w*U*1024 + ((l%16)/4)*256 + (l%4)*16 + (l/16)*64")
    A("v_and_b32 v%d, 3, v0" % vT2)
    A("v_bfe_u32 v%d, v0, 4, 2" % vT1)
    A("v_lshlrev_b32 v%d, 6, v%d" % (vT1, vT1))
    A("v_lshl_add_u32 v%d, v%d, 4, v%d" % (vT2, vT2, vT1))
    A("v_bfe_u32 v%d, v0, 2, 2" % vT1)
    A("v_lshl_add_u32 v%d, v%d, 8, v%d" % (vKOFF, vT1, vT2))
    A("v_lshrrev_b32 v%d, 6, v0" % vT0)
    A("v_lshl_add_u32 v%d, v%d, %d, v%d" % (vKOFF, vT0, 10 + int(math.log2(U)), vKOFF))
    C("Q lane offset: h*256 + chunk, h = (l>>3)&1 ; soffset p*512")
    A("v_bfe_u32 v%d, v0, 3, 1" % vT1)
    A("v_lshl_add_u32 v%d, v%d, 8, v%d" % (vT1, vT1, vT2))
    A("s_lshl_b32 s%d, s%d, 9" % (sTMP, sP))
    A("s_mov_b32 s%d, 0x4000000" % (sK + 2))
    A("s_mov_b32 s%d, 0x20000" % (sK + 3))
    A("s_movk_i32 s%d, 0x4000" % (sQ + 2))
    A("s_mov_b32 s%d, 0x20000" % (sQ + 3))
    A("s_mov_b32 s%d, s%d" % (sVO, sKO))
    A("s_waitcnt lgkmcnt(0)")
    if st2 == 1: stamp(2)

    issued = []
    def waitfor(tag):
        idx = issued.index(tag)
        n = len(issued) - 1 - idx
        assert n <= 63
        A("s_waitcnt vmcnt(%d)" % n)
    def qload():
        if konly: A("s_waitcnt lgkmcnt(0)")
        A("buffer_load_dwordx4 v[%d:%d], v%d, s[%d:%d], s%d offen" % (vQ, vQ + 3, vT1, sQ, sQ + 3, sTMP))
        issued.append("q")
    if qpos == 0: qload()

    def slot(j): return RING + 4 * (j % R)
    cur = {0: 0, 1: 0}
    def issue(j):
        isK = j < T
        i = j if isK else j - T
        b = (i // U) * (NW * U * 1024) + (i % U) * 1024
        so = sKO if isK else sVO
        k = 0 if isK else 1
        if b - cur[k] >= 4096:
            adv = (b - cur[k]) // 4096 * 4096
            A("s_add_u32 s%d, s%d, 0x%x" % (so, so, adv))
            cur[k] += adv
        imm = b - cur[k]
        r = slot(j)
        cf = cflag.split(",")[0 if isK else -1]
        A("buffer_load_dwordx4 v[%d:%d], v%d, s[%d:%d], s%d offen%s%s" % (
            r, r + 3, vKOFF if isK else vVOFF, sK if isK else sV, (sK if isK else sV) + 3, so,
            (" offset:%d" % imm) if imm else "", (" " + cf) if cf else ""))
        issued.append(j)

    for j in range(R):
        issue(j)
        if j == 0 and konly: restptrs()
        if j == 0 and st2 == 2:
            A("s_waitcnt vmcnt(0)"); stamp(2)
        if j == qpos - 1: qload()
        if j == tpos - 1 and touch:
            C("first touch of the other buffers (address translation warm-up), values unused")
            for s_, n_ in ((sV, 0x4000000), (sOUT, 16384), (sDBG, 256), (sWS, NWG * 2048 + 4096)):
                A("s_mov_b32 s%d, 0x%x" % (s_ + 2, n_))
                A("s_mov_b32 s%d, 0x20000" % (s_ + 3))
            if "v" in touch:
                A("buffer_load_dword v%d, off, s[%d:%d], s%d nt" % (vCLR, sV, sV + 3, sVO)); issued.append("t")
            if "w" in touch:
                A("s_mov_b32 s%d, 0x%x" % (sIT, NWG * 2048)); A("buffer_load_dword v%d, off, s[%d:%d], s%d" % (vCLR, sWS, sWS + 3, sIT)); issued.append("t")
            if "d" in touch:
                A("buffer_load_dword v%d, off, s[%d:%d], 0 sc1" % (vCLR, sDBG, sDBG + 3)); issued.append("t")
            if "o" in touch:
                A("buffer_load_dword v%d, off, s[%d:%d], 0" % (vCLR, sOUT, sOUT + 3)); issued.append("t")

    C("remaining setup while loads fly")
    A("s_load_dword s%d, s[%d:%d], 0" % (sMASK, sMP, sMP + 1))
    if not touch:
        A("s_load_dwordx2 s[%d:%d], s[0:1], 48" % (sOUT, sOUT + 1))
        A("s_load_dwordx2 s[%d:%d], s[0:1], 56" % (sDBG, sDBG + 1))
        A("s_load_dwordx2 s[%d:%d], s[0:1], 64" % (sWS, sWS + 1))
    for s, n in ((sV, 0x4000000), (sKT, 8192), (sVT, 8192), (sOUT, 16384), (sDBG, 256), (sWS, NWG * 2048 + 4096)):
        A("s_mov_b32 s%d, 0x%x" % (s + 2, n))
        A("s_mov_b32 s%d, 0x20000" % (s + 3))
    if stamps:
        A("s_getreg_b32 s%d, hwreg(HW_REG_XCC_ID)" % (sST + 2))
        A("s_getreg_b32 s%d, hwreg(HW_REG_HW_ID)" % (sST + 3))
    A("v_and_b32 v%d, 63, v0" % vLANE)
    A("v_lshlrev_b32 v%d, 4, v%d" % (vVOFF, vLANE))
    A("v_lshl_add_u32 v%d, v%d, %d, v%d" % (vVOFF, vT0, 10 + int(math.log2(U)), vVOFF))
    A("v_readfirstlane_b32 s%d, v%d" % (sWV, vT0))
    C("tree tiles")
    A("s_lshl_b32 s%d, s%d, 8" % (sTMP2, sP))
    A("v_and_b32 v%d, 15, v0" % vT1)
    A("v_lshlrev_b32 v%d, 4, v%d" % (vT1, vT1))
    A("buffer_load_dwordx4 v[%d:%d], v%d, s[%d:%d], s%d offen" % (vKT, vKT + 3, vT2, sKT, sKT + 3, sTMP2))
    issued.append("kt")
    A("buffer_load_dwordx4 v[%d:%d], v%d, s[%d:%d], s%d offen" % (vVT, vVT + 3, vT1, sVT, sVT + 3, sTMP2))
    issued.append("vt")
    A("s_mov_b32 s%d, %s" % (sC, f32hex(cscale)))
    C("LDS address for stats: h*NW*4 + w*4 (h=(l>>3)&1)")
    A("v_bfe_u32 v%d, v0, 3, 1" % vT1)
    A("v_lshlrev_b32 v%d, %d, v%d" % (vT1, int(math.log2(NW * 4)), vT1))
    A("v_lshl_add_u32 v%d, v%d, 2, v%d" % (vLDSA, vT0, vT1))
    C("AND masks: reg r: (l%8)==2r -> 0xffff ; (l%8)==2r+1 -> 0xffff0000 ; else 0")
    A("v_and_b32 v%d, 1, v0" % vT0)
    A("v_lshlrev_b32 v%d, 4, v%d" % (vT0, vT0))
    A("v_mov_b32 v%d, 0xffff" % vT1)
    A("v_lshlrev_b32 v%d, v%d, v%d" % (vT1, vT0, vT1))
    A("v_bfe_u32 v%d, v0, 1, 2" % vT0)
    for r in range(4):
        A("v_cmp_eq_u32 vcc, %d, v%d" % (r, vT0))
        A("s_nop 1")
        A("v_cndmask_b32 v%d, 0, v%d, vcc" % (vMASK + r, vT1))
    for i in range(4):
        A("v_mov_b32 v%d, 0" % (vACC + i))
    A("v_lshlrev_b32 v%d, 4, v%d" % (vL16, vLANE))
    A("v_mov_b32 v%d, 1" % vTK)
    A("s_lshl_b32 s%d, s%d, 14" % (sTMP, sP))
    for i in range(8):
        A("s_xor_b32 s%d, s%d, %d" % (sSLOT + i, sS, i))
        A("s_lshl_b32 s%d, s%d, 11" % (sSLOT + i, sSLOT + i))
        A("s_add_u32 s%d, s%d, s%d" % (sSLOT + i, sSLOT + i, sTMP))
    A("s_lshl_b32 s%d, s%d, 3" % (sDB, sP))
    A("s_lshl_b32 s%d, s%d, 7" % (sEPO, sP))
    A("s_add_u32 s%d, s%d, 0x%x" % (sEPO, sEPO, NWG * 2048))
    A("s_waitcnt lgkmcnt(0)")
    C("tree bias (raw score units): (1-mask)*(-1e9)/scale for tid<16 of split 0, else -inf")
    A("s_and_b32 s%d, s%d, 16" % (sTMP, sP))
    A("s_lshr_b32 s%d, s%d, s%d" % (sMASK, sMASK, sTMP))
    A("s_lshl_b32 s%d, s%d, 16" % (sMASK, sMASK))
    A("v_mov_b32 v%d, s%d" % (vBIAS, sMASK))
    A("v_sub_f32 v%d, 1.0, v%d" % (vBIAS, vBIAS))
    A("v_mul_f32 v%d, %s, v%d" % (vBIAS, f32hex(-1e9 * math.sqrt(128.0)), vBIAS))
    A("s_cmp_eq_u32 s%d, 0" % sS)
    A("s_cselect_b32 s%d, 16, 0" % sTMP)
    A("v_mov_b32 v%d, 0xff800000" % vT0)
    A("v_cmp_gt_u32 vcc, s%d, v0" % sTMP)
    A("s_nop 1")
    A("v_cndmask_b32 v%d, v%d, v%d, vcc" % (vBIAS, vT0, vBIAS))

    def dppsum(dst, d):
        A("v_mov_b32_dpp v%d, v%d quad_perm:[0,0,0,0] row_mask:0xf bank_mask:0xf" % (dst, d))
        A("v_add_f32_dpp v%d, v%d, v%d quad_perm:[1,1,1,1] row_mask:0xf bank_mask:0xf" % (dst, d + 1, dst))
        A("v_add_f32_dpp v%d, v%d, v%d quad_perm:[2,2,2,2] row_mask:0xf bank_mask:0xf" % (dst, d + 2, dst))
        A("v_add_f32_dpp v%d, v%d, v%d quad_perm:[3,3,3,3] row_mask:0xf bank_mask:0xf" % (dst, d + 3, dst))

    if only >= 0:
        A("s_and_b32 s%d, s2, 7" % sTMP)
        A("s_lshr_b32 s%d, 0x%x, s%d" % (sTMP, only, sTMP))
        A("s_bitcmp0_b32 s%d, 0" % sTMP)
        A("s_cbranch_scc1 L_dump")
    C("---- QK phase")
    pend = []
    done_s = []
    first_max = [True]
    def fold_max():
        while len(done_s) >= 2:
            a, b = done_s.pop(0), done_s.pop(0)
            if first_max[0]:
                A("v_max_f32 v%d, v%d, v%d" % (vM, a, b)); first_max[0] = False
            else:
                A("v_max3_f32 v%d, v%d, v%d, v%d" % (vM, vM, a, b))
    tree_pos = min(T - 1, R + 1)
    seq = []
    for i in range(T):
        seq.append(("k", i))
        if i == tree_pos: seq.append(("tree", T))
    for n, (kind, i) in enumerate(seq):
        d = vD[n % 4]
        if kind == "tree":
            A("v_mfma_f32_16x16x32_bf16 v[%d:%d], v[%d:%d], v[%d:%d], 0" % (d, d + 3, vKT, vKT + 3, vQ, vQ + 3))
            mpos = cnt[0]
        else:
            if i == 0 and qpos > 0: waitfor("q")
            else: waitfor(i)
            if i == 0 and st2 == 0: stamp(2)
            r = slot(i)
            A("v_mfma_f32_16x16x32_bf16 v[%d:%d], v[%d:%d], v[%d:%d], 0" % (d, d + 3, r, r + 3, vQ, vQ + 3))
            mpos = cnt[0]
            if i + R < 2 * T:
                issue(i + R)
            if i == dryat:
                C("one wave walks the gather/combine arithmetic with no lanes active (instruction fetch warm-up)")
                A("s_cmp_lg_u32 s%d, %d" % (sWV, drywave))
                A("s_cbranch_scc1 L_dry_back")
                A("s_mov_b64 exec, 0")
                A("s_mov_b64 vcc, 0")
                A("s_mov_b32 s%d, 1" % sIT)
                A("s_branch L_check")
                LBL("L_dry_back")
                A("s_mov_b64 exec, -1")
                A("s_nop 4")
        pend.append((SREG + i, d, mpos))
        if len(pend) > 2:
            dst, dd, pos = pend.pop(0)
            pad_since(pos, 8)
            dppsum(dst, dd)
            if dst == SREG + T:
                A("v_add_f32 v%d, v%d, v%d" % (dst, dst, vBIAS))
            done_s.append(dst)
            fold_max()
    assert issued.index("vt") < issued.index(tree_pos)
    for dst, dd, pos in pend:
        pad_since(pos, 8)
        dppsum(dst, dd)
        assert dst != SREG + T
        done_s.append(dst)
    fold_max()
    if done_s:
        A("v_max_f32 v%d, v%d, v%d" % (vM, vM, done_s.pop()))
    C("---- max")
    stamp(3)
    def xrow(op, v):
        A("v_mov_b32 v%d, v%d" % (vT0, v))
        A("s_nop 1")
        A("v_permlane16_swap_b32 v%d, v%d" % (v, vT0))
        A("s_nop 1")
        A("%s v%d, v%d, v%d" % (op, v, v, vT0))
        A("v_mov_b32 v%d, v%d" % (vT0, v))
        A("s_nop 1")
        A("v_permlane32_swap_b32 v%d, v%d" % (v, vT0))
        A("s_nop 1")
        A("%s v%d, v%d, v%d" % (op, v, v, vT0))
    xrow("v_max_f32", vM)
    A("ds_write_b32 v%d, v%d offset:%d" % (vLDSA, vM, OFF_M))
    A("v_bfe_u32 v%d, v0, 3, 1" % vT1)
    A("v_lshlrev_b32 v%d, %d, v%d" % (vT1, int(math.log2(NW * 4)), vT1))
    A("s_waitcnt lgkmcnt(0)")
    A("s_barrier")
    nq = NW // 4
    for q in range(nq):
        A("ds_read_b128 v[%d:%d], v%d offset:%d" % (vD[q], vD[q] + 3, vT1, OFF_M + 16 * q))
    A("s_waitcnt lgkmcnt(0)")
    regs = [vD[q] + i for q in range(nq) for i in range(4)]
    for k in range(0, len(regs), 2):
        A("v_max3_f32 v%d, v%d, v%d, v%d" % (vM, vM, regs[k], regs[k + 1]))
    A("v_mul_f32 v%d, s%d, v%d" % (vM, sC, vM))
    A("v_sub_f32 v%d, 0, v%d" % (vNMC, vM))
    C("---- exp (software-pipelined into the PV loop)")
    def expo(i):
        A("v_fma_f32 v%d, v%d, s%d, v%d" % (SREG + i, SREG + i, sC, vNMC))
        A("v_exp_f32 v%d, v%d" % (SREG + i, SREG + i))
    lfirst = [True]
    def fin(i):
        if lfirst[0]:
            A("v_mov_b32 v%d, v%d" % (vL, SREG + i)); lfirst[0] = False
        else:
            A("v_add_f32 v%d, v%d, v%d" % (vL, vL, SREG + i))
        A("v_cvt_pk_bf16_f32 v%d, v%d, v%d" % (SREG + i, SREG + i, SREG + i))
    def expand(i, n):
        p = vD[n % 4]
        for r in range(4):
            A("v_and_b32 v%d, v%d, v%d" % (p + r, SREG + i, vMASK + r))
    seq = [("tree", T)] + [("v", i) for i in range(T)]
    NS = len(seq)
    e_next = [0]; f_next = [0]
    def run_exp(k):
        for _ in range(k):
            if e_next[0] < NS:
                expo(seq[e_next[0]][1]); e_next[0] += 1
    def run_fin(upto):
        while f_next[0] < min(upto, NS):
            fin(seq[f_next[0]][1]); f_next[0] += 1
    run_exp(4)
    run_fin(3)
    expand(seq[0][1], 0)
    expand(seq[1][1], 1)
    l_done = [False]
    vOA = vKT
    SETB = RING
    assert 56 <= 4 * R
    def polls(SET):
        for i in range(1, 8):
            for g in range(2):
                r = SET + 8 * (i - 1) + 4 * g
                A("buffer_load_dwordx4 v[%d:%d], v%d, s[%d:%d], s%d offen%s %s" % (r, r + 3, vL16, sWS, sWS + 3, sSLOT + i, " offset:1024" if g else "", pld))
    mp = [0]
    def pvstep(n):
        kind, i = seq[n]
        p = vD[n % 4]
        if kind == "tree":
            r = vVT
        else:
            waitfor(T + i)
            r = slot(T + i)
        A("v_mfma_f32_16x16x32_bf16 v[%d:%d], v[%d:%d], v[%d:%d], v[%d:%d]" % (vACC, vACC + 3, p, p + 3, r, r + 3, vACC, vACC + 3))
        mp[0] = cnt[0]
        if kind != "tree" and T + i + R < 2 * T:
            issue(T + i + R)
        if n == epat:
            C("wave 0: hand-off generation word of this pair (tells this launch's records from older ones)")
            A("s_cmp_lg_u32 s%d, 0" % sWV)
            A("s_cbranch_scc1 L_skip_ep")
            A("buffer_load_dword v%d, off, s[%d:%d], s%d sc1" % (vEP, sWS, sWS + 3, sEPO))
            if warm.startswith("ld"):
                fl = warm[2:].strip()
                A("buffer_load_dwordx4 v[%d:%d], v%d, s[%d:%d], s%d offen %s" % (vKT, vKT + 3, vL16, sWS, sWS + 3, sSLOT, fl))
                A("buffer_load_dwordx4 v[%d:%d], v%d, s[%d:%d], s%d offen offset:1024 %s" % (vKT, vKT + 3, vL16, sWS, sWS + 3, sSLOT, fl))
            if warm.startswith("st"):
                fl = warm[2:].strip()
                A("buffer_store_dwordx4 v[%d:%d], v%d, s[%d:%d], s%d offen %s" % (vMASK, vMASK + 3, vL16, sWS, sWS + 3, sSLOT, fl))
                A("buffer_store_dwordx4 v[%d:%d], v%d, s[%d:%d], s%d offen offset:1024 %s" % (vMASK, vMASK + 3, vL16, sWS, sWS + 3, sSLOT, fl))
            LBL("L_skip_ep")
            assert n + R + 2 < NS - KT
        had = e_next[0]
        run_exp(2)
        run_fin(had if e_next[0] > had else NS)
        if had == e_next[0] and f_next[0] == NS and not l_done[0]:
            l_done[0] = True
            xrow("v_add_f32", vL)
            A("ds_write_b32 v%d, v%d offset:%d" % (vLDSA, vL, OFF_L))
            C("epilogue addresses")
            A("v_lshlrev_b32 v%d, 4, v0" % vT0)
            A("v_lshrrev_b32 v%d, 5, v%d" % (vT2, vLANE))
            A("v_lshlrev_b32 v%d, 8, v%d" % (vOA, vT2))
            A("v_lshlrev_b32 v%d, %d, v%d" % (vT2, int(math.log2(NW * 4)), vT2))
            C("M for head h' = lane/32 (scaled): lanes 0 / 8 hold heads 0 / 1")
            A("v_readlane_b32 s%d, v%d, 0" % (sTMP, vM))
            A("v_readlane_b32 s%d, v%d, 8" % (sTMP2, vM))
            A("v_cmp_gt_u32 vcc, 32, v%d" % vLANE)
            A("v_mov_b32 v%d, s%d" % (vT1, sTMP))
            A("v_mov_b32 v%d, s%d" % (vG + 6, sTMP2))
            A("v_cndmask_b32 v%d, v%d, v%d, vcc" % (vG + 2, vG + 6, vT1))
            C("out byte offset: p*512 + h'*256 + (l%16)*16 + ((l>>4)&1)*8")
            A("v_and_b32 v%d, 15, v%d" % (vT1, vLANE))
            A("v_lshl_add_u32 v%d, v%d, 4, v%d" % (vOA, vT1, vOA))
            A("v_bfe_u32 v%d, v%d, 4, 1" % (vT1, vLANE))
            A("v_lshl_add_u32 v%d, v%d, 3, v%d" % (vOA, vT1, vOA))
            A("s_lshl_b32 s%d, s%d, 9" % (sTMP2, sP))
        if n + 2 < NS:
            assert f_next[0] > n + 2
            expand(seq[n + 2][1], n + 2)
    for n in range(NS):
        if n == NS - KT:
            assert l_done[0]
            C("wave 0: arrival ticket of this split")
            A("s_cmp_lg_u32 s%d, 0" % sWV)
            A("s_cbranch_scc1 L_skip_tk")
            A("v_readfirstlane_b32 s%d, v%d" % (sTAG, vEP))
            A("s_mov_b64 exec, 1")
            A("buffer_atomic_add v%d, off, s[%d:%d], s%d sc0 sc1" % (vTK, sDBG, sDBG + 3, sDB))
            A("s_mov_b64 exec, -1")
            A("s_mul_i32 s%d, s%d, 0x9e3779b1" % (sTAG, sTAG))
            A("s_add_u32 s%d, s%d, 0x7f4a7c15" % (sTAG, sTAG))
            A("s_movk_i32 s%d, 0x7fff" % sIT)
            A("v_mov_b32 v%d, s%d" % (vG + 3, sTAG))
            A("v_mov_b32 v%d, s%d" % (vG + 7, sTAG))
            LBL("L_skip_tk")
        pvstep(n)
    ENDL = "L_dump" if stamps else "L_end"
    stamp(4)
    A("s_cmp_eq_u32 s%d, 0" % sWV)
    A("s_cbranch_scc1 L_w0")
    C("---- waves 1..3: hand the sums to wave 0")
    pad_since(mp[0], 8)
    A("ds_write_b128 v%d, v[%d:%d] offset:%d" % (vT0, vACC, vACC + 3, OFF_O))
    A("s_waitcnt lgkmcnt(0)")
    A("s_barrier")
    if dryend:
        A("s_mov_b64 exec, 0")
        A("s_mov_b64 vcc, 0")
        A("s_mov_b32 s%d, 0" % sIT)
        A("s_branch L_check")
    elif stamps: A("s_branch L_dump")
    else: A("s_endpgm")
    LBL("L_w0")
    def reduce_own():
        B0 = 4
        for w in range(1, NW):
            A("ds_read_b128 v[%d:%d], v%d offset:%d" % (B0 + 4 * w, B0 + 4 * w + 3, vL16, OFF_O + 1024 * w))
        BL = B0 + 4 * NW
        A("ds_read_b128 v[%d:%d], v%d offset:%d" % (BL, BL + 3, vT2, OFF_L))
        pad_since(mp[0], 8)
        for w in range(1, NW):
            A("s_waitcnt lgkmcnt(%d)" % ((NW - 1 - w) + 1))
            for hh in (0, 2):
                d = vACC + hh if w < NW - 1 else vG + 2 * hh
                A("v_pk_add_f32 v[%d:%d], v[%d:%d], v[%d:%d]" % (d, d + 1, vACC + hh, vACC + hh + 1, B0 + 4 * w + hh, B0 + 4 * w + hh + 1))
        return BL
    def lsum(BL):
        A("s_waitcnt lgkmcnt(0)")
        A("v_pk_add_f32 v[%d:%d], v[%d:%d], v[%d:%d]" % (BL, BL + 1, BL, BL + 1, BL + 2, BL + 3))
        A("v_add_f32 v%d, v%d, v%d" % (vG + 6, BL, BL + 1))
    def publish():
        BL = reduce_own()
        A("buffer_store_dwordx4 v[%d:%d], v%d, s[%d:%d], s%d offen %s" % (vG, vG + 3, vL16, sWS, sWS + 3, sSLOT, pst))
        lsum(BL)
        A("buffer_store_dwordx4 v[%d:%d], v%d, s[%d:%d], s%d offen offset:1024 %s" % (vG + 4, vG + 7, vL16, sWS, sWS + 3, sSLOT, pst))
    def check(SET, lbl):
        for i in range(7):
            A("v_bitop3_b32 v%d, v%d, v%d, s%d bitop3:0x7e" % (8 + i, SET + 8 * i + 3, SET + 8 * i + 7, sTAG))
        A("v_or3_b32 v8, v8, v9, v10")
        A("v_or3_b32 v11, v11, v12, v13")
        A("v_or3_b32 v8, v8, v11, v14")
        A("v_cmp_ne_u32 vcc, 0, v8")
        A("s_cbranch_vccnz L_repoll")
    def combine(SET):
        G = [vG] + [SET + 8 * i for i in range(7)]
        A("v_max3_f32 v8, v%d, v%d, v%d" % (G[0] + 2, G[1] + 2, G[2] + 2))
        A("v_max3_f32 v9, v%d, v%d, v%d" % (G[3] + 2, G[4] + 2, G[5] + 2))
        A("v_max3_f32 v8, v8, v%d, v%d" % (G[6] + 2, G[7] + 2))
        A("v_max_f32 v8, v8, v9")
        for s in range(8):
            A("v_sub_f32 v%d, v%d, v8" % (G[s] + 2, G[s] + 2))
            A("v_exp_f32 v%d, v%d" % (G[s] + 2, G[s] + 2))
        for s in range(8):
            A("v_mul_f32 v%d, v%d, v%d" % (G[s] + 6, G[s] + 2, G[s] + 6))
        for st in (1, 2, 4):
            for s in range(0, 8, 2 * st):
                A("v_add_f32 v%d, v%d, v%d" % (G[s] + 6, G[s] + 6, G[s + st] + 6))
        A("v_rcp_f32 v8, v%d" % (G[0] + 6))
        for s in range(8):
            for hh in (0, 4):
                A("v_pk_mul_f32 v[%d:%d], v[%d:%d], v[%d:%d] op_sel_hi:[1,0]" % (G[s] + hh, G[s] + hh + 1, G[s] + hh, G[s] + hh + 1, G[s] + 2, G[s] + 3))
        for st in (1, 2, 4):
            for s in range(0, 8, 2 * st):
                for hh in (0, 4):
                    A("v_pk_add_f32 v[%d:%d], v[%d:%d], v[%d:%d]" % (G[s] + hh, G[s] + hh + 1, G[s] + hh, G[s] + hh + 1, G[s + st] + hh, G[s + st] + hh + 1))
        A("s_branch L_fin")
    C("only the holder of the last ticket gathers; the others publish")
    A("v_readfirstlane_b32 s%d, v%d" % (sTMP, vTK))
    A("s_cmp_lg_u32 s%d, %d" % (sTMP, NSPLIT - 1))
    A("s_cbranch_scc1 L_nopoll")
    polls(SETB)
    LBL("L_nopoll")
    A("s_barrier")
    stamp(5)
    mp[0] = cnt[0] - 6
    BL = reduce_own()
    A("s_cbranch_scc0 L_last")
    A("buffer_store_dwordx4 v[%d:%d], v%d, s[%d:%d], s%d offen %s" % (vG, vG + 3, vL16, sWS, sWS + 3, sSLOT, pst))
    lsum(BL)
    A("buffer_store_dwordx4 v[%d:%d], v%d, s[%d:%d], s%d offen offset:1024 %s" % (vG + 4, vG + 7, vL16, sWS, sWS + 3, sSLOT, pst))
    stamp(6)
    if stamps: A("s_branch L_dump")
    else: A("s_endpgm")
    LBL("L_last")
    lsum(BL)
    LBL("L_wait")
    A("s_waitcnt vmcnt(0)")
    stamp(6)
    LBL("L_check")
    check(SETB, None)
    LBL("L_comb")
    combine(SETB)
    L.pop()
    A("v_pk_mul_f32 v[%d:%d], v[%d:%d], v[8:9] op_sel_hi:[1,0]" % (vG, vG + 1, vG, vG + 1))
    A("v_pk_mul_f32 v[%d:%d], v[%d:%d], v[8:9] op_sel_hi:[1,0]" % (vG + 4, vG + 5, vG + 4, vG + 5))
    A("v_cvt_pk_bf16_f32 v16, v%d, v%d" % (vG, vG + 1))
    A("v_cvt_pk_bf16_f32 v17, v%d, v%d" % (vG + 4, vG + 5))
    if dryend or dryat >= 0:
        A("s_cbranch_execz L_dryexit")
    A("buffer_store_dwordx2 v[16:17], v%d, s[%d:%d], s%d offen%s" % (vOA, sOUT, sOUT + 3, sTMP2, (" " + ost) if ost else ""))
    C("advance the generation word")
    A("s_mov_b64 exec, 1")
    A("buffer_store_dword v%d, off, s[%d:%d], s%d sc1" % (vG + 7, sWS, sWS + 3, sEPO))
    if stamps:
        A("s_waitcnt vmcnt(0)")
        stamp(7)
        LBL("L_dump")
        A("s_waitcnt vmcnt(0) lgkmcnt(0)")
        A("s_mov_b64 exec, 1")
        if amp >= 0:
            if amp == 8:
                A("s_memrealtime s[%d:%d]" % (sST + 2, sST + 3))
                A("s_waitcnt lgkmcnt(0)")
            k = 1 if amp == 8 else amp
            A("s_cmp_eq_u32 s%d, 0" % (sST + 2 * k))
            A("s_cbranch_scc1 L_end")
            A("s_sub_u32 s%d, s%d, s%d" % (sTMP, sST + 2 * k, sST))
            A("s_min_u32 s%d, s%d, 5000" % (sTMP, sTMP))
            A("s_mul_i32 s%d, s%d, %d" % (sTMP, sTMP, ampk))
            LBL("L_spin")
            A("s_sleep 2")
            A("s_memrealtime s[%d:%d]" % (sST + 2, sST + 3))
            A("s_waitcnt lgkmcnt(0)")
            A("s_sub_u32 s%d, s%d, s%d" % (sTMP2, sST + 2, sST))
            A("s_cmp_lt_u32 s%d, s%d" % (sTMP2, sTMP))
            A("s_cbranch_scc1 L_spin")
            A("s_endpgm")
        if hst:
            for dw, k, neg in ((1, 0, 1), (3, 0, 0), (5, 2, 1), (7, 2, 0), (9, 3, 0), (11, 4, 1), (13, 4, 0), (15, 7, 0)):
                if neg:
                    A("s_not_b32 s%d, s%d" % (sTMP, sST + 2 * k))
                    A("v_mov_b32 v12, s%d" % sTMP)
                else:
                    A("v_mov_b32 v12, s%d" % (sST + 2 * k))
                A("buffer_atomic_umax v12, off, s[%d:%d], 0 offset:%d sc1" % (sDBG, sDBG + 3, 4 * dw))
                A("s_nop 2")
            A("s_endpgm")
        A("s_mov_b32 s%d, 0x10000000" % (sWS + 2))
        A("s_lshl_b32 s%d, s2, %d" % (sTMP, int(math.log2(NW)) + 6))
        A("s_lshl_b32 s%d, s%d, 6" % (sTMP2, sWV))
        A("s_add_u32 s%d, s%d, s%d" % (sTMP, sTMP, sTMP2))
        A("s_add_u32 s%d, s%d, 0x1000000" % (sTMP, sTMP))
        A("v_mov_b32 v11, 0")
        for k in range(4):
            for i in range(4):
                A("v_mov_b32 v%d, s%d" % (12 + i, sST + 4 * k + i))
            A("buffer_store_dwordx4 v[12:15], v11, s[%d:%d], s%d offen offset:%d" % (sWS, sWS + 3, sTMP, 16 * k))
            A("s_nop 2")
    LBL("L_end")
    A("s_endpgm")
    LBL("L_repoll")
    polls(SETB)
    A("s_sub_u32 s%d, s%d, 1" % (sIT, sIT))
    A("s_cmp_lg_u32 s%d, 0" % sIT)
    A("s_cbranch_scc1 L_wait")
    A("s_waitcnt vmcnt(0)")
    A("s_branch L_comb")
    if dryend or dryat >= 0:
        LBL("L_dryexit")
        if dryat >= 0:
            A("s_cmp_eq_u32 s%d, 1" % sIT)
            A("s_cbranch_scc1 L_dry_back")
        if stamps: A("s_branch L_dump")
        else: A("s_endpgm")

    out = HEADER
    out += "; @launch grid=(%d,1,1) block=(%d,1,1) lds=%d\n" % (NWG, NW * 64, LDS)
    out += '.amdgcn_target "amdgcn-amd-amdhsa--gfx950"\n.text\n'
    out += ".globl %s_kernel\n.p2align 8\n.type %s_kernel,@function\n%s_kernel:\n" % (NAME, NAME, NAME)
    out += "\n".join(L) + "\n"
    out += '.section .rodata,"a"\n.p2align 6\n.amdhsa_kernel %s_kernel\n' % NAME
    out += "  .amdhsa_next_free_vgpr %d\n  .amdhsa_next_free_sgpr %d\n  .amdhsa_accum_offset %d\n" % (total_v, 96 if stamps else 64, total_v)
    out += "  .amdhsa_group_segment_fixed_size 0\n  .amdhsa_kernarg_size 72\n  .amdhsa_user_sgpr_count 2\n"
    out += "  .amdhsa_user_sgpr_kernarg_segment_ptr 1\n  .amdhsa_system_sgpr_workgroup_id_x 1\n"
    out += "  .amdhsa_float_denorm_mode_32 3\n"
    out += ".end_amdhsa_kernel\n"
    return out

if __name__ == "__main__":
    names = []
    for spec in sys.argv[1:]:
        kw = {}
        main = False
        for kv in spec.split(","):
            if kv == "MAIN": main = True; continue
            k, v = kv.split("=")
            kw[k] = int(v) if v.lstrip("-").isdigit() else v.replace("+", " ")
        n = "var/g5_" + spec.replace(",", "_").replace("=", "").replace("+", "") + ".s"
        if main: n = "cdna_kernels/%s.s" % NAME
        open("code/" + n, "w").write(gen(**kw))
        names.append(n)
    print(" ".join(names))
    print(str(["bench/bench.py", "bench/flush.s", "bench/icev.s", "cdna_kernels/cdna_launch.py", "cdna_kernels/cdna_unwritten_srd_check.py"] + names).replace("'", '"'))
    print(str(names).replace("'", '"'))
```

```python
import sys, math, struct

NAME = "standalone__tree_speculative_verify_tree_attention_over_candidate_token_tree__decode"

HEADER = """; Kernarg layout for this problem (72 bytes, ptrs only, base s[0:1]):
;   offset   0: d_in[0] q  shape=(2, 32, 1, 128) dtype=bfloat16 strides=(8192, 256, 256, 2) contiguous=True
;   offset   8: d_in[1] k_cache  shape=(2, 16, 8192, 128) dtype=bfloat16 strides=(33554432, 2097152, 256, 2) contiguous=True
;   offset  16: d_in[2] v_cache  shape=(2, 16, 8192, 128) dtype=bfloat16 strides=(33554432, 2097152, 256, 2) contiguous=True
;   offset  24: d_in[3] k_tree  shape=(2, 16, 1, 128) dtype=bfloat16 strides=(4096, 256, 256, 2) contiguous=True
;   offset  32: d_in[4] v_tree  shape=(2, 16, 1, 128) dtype=bfloat16 strides=(4096, 256, 256, 2) contiguous=True
;   offset  40: d_in[5] tree_mask  shape=(2, 1, 1) dtype=bfloat16 strides=(2, 2, 2) contiguous=True
;   offset  64: d_ws      268435456 bytes workspace (unspecified values whenever your kernel or launch list starts; a list's later launches find what earlier ones wrote)
"""

def f32hex(x):
    return "0x%08x" % struct.unpack("<I", struct.pack("<f", x))[0]

def gen(NW=4, R=24, U=1, cflag="nt", wgmap="sm", stamps=0, lds_extra=0, KT=8, pst="sc1", pld="sc1", ost="", epat=8, st2=0, qpos=0, konly=0, dryend=0, dryat=-1, drywave=3, warm="", only=-1, hst=0, amp=-1, ampk=5, rep=-1, repb=16):
    touch = ""; tpos = 0
    NSPLIT = 8
    NWG = 32 * NSPLIT
    T = 8192 // NSPLIT // NW // 4
    L = []
    cnt = [0]
    def A(s):
        L.append("    " + s)
        m = s.split()
        cnt[0] += (int(m[1]) + 1) if m[0] == "s_nop" else 1
    def pad_since(pos, need):
        have = cnt[0] - pos
        if have < need:
            A("s_nop %d" % (need - have - 1))
    def C(s): L.append("    ; " + s)
    def LBL(s): L.append(s + ":")

    vKOFF, vVOFF = 1, 2
    vT0, vT1, vT2 = 3, 36, 37
    vQ = 4
    vD = [8, 12, 16, 20]
    vKT, vVT = 24, 28
    vMASK = 32
    vBIAS, vL, vACC, vLANE, vLDSA, vM, vNMC = 38, 39, 40, 44, 45, 46, 47
    vG, vL16, vTK, vEP = 48, 56, 57, 38
    vCLR = vEP
    SREG = 58
    RING = (SREG + T + 1 + 3) // 4 * 4
    total_v = (RING + 4 * R + 7) // 8 * 8
    assert total_v <= 256

    OFF_M, OFF_L, OFF_O = 0, 128, 256
    LDS = OFF_O + NW * 1024 + lds_extra
    cscale = (128 ** -0.5) * math.log2(math.e)

    sK, sV, sQ, sKT, sVT, sOUT, sDBG, sWS = 4, 8, 12, 16, 20, 24, 28, 32
    sMP = 36
    sP, sS, sWV, sMASK, sC, sTMP, sTMP2, sKO, sVO = 40, 41, 42, 43, 44, 45, 46, 47, 48
    sSLOT = 50
    sDB, sTAG, sIT, sEPO = 58, 59, 60, 61
    sST = 64
    def stamp(k):
        if stamps:
            A("s_memrealtime s[%d:%d]" % (sST + 2 * k, sST + 2 * k + 1))

    if stamps:
        for k in range(16):
            A("s_mov_b32 s%d, 0" % (sST + k))
        stamp(0)
    A("s_load_dwordx2 s[%d:%d], s[0:1], 8" % (sK, sK + 1))
    def restptrs():
        A("s_load_dwordx2 s[%d:%d], s[0:1], 0" % (sQ, sQ + 1))
        A("s_load_dwordx2 s[%d:%d], s[0:1], 16" % (sV, sV + 1))
        A("s_load_dwordx2 s[%d:%d], s[0:1], 24" % (sKT, sKT + 1))
        A("s_load_dwordx2 s[%d:%d], s[0:1], 32" % (sVT, sVT + 1))
        A("s_load_dwordx2 s[%d:%d], s[0:1], 40" % (sMP, sMP + 1))
    if not konly: restptrs()
    else: assert qpos > 0
    if touch:
        A("s_load_dwordx2 s[%d:%d], s[0:1], 48" % (sOUT, sOUT + 1))
        A("s_load_dwordx2 s[%d:%d], s[0:1], 56" % (sDBG, sDBG + 1))
        A("s_load_dwordx2 s[%d:%d], s[0:1], 64" % (sWS, sWS + 1))
    A("s_cmp_ge_u32 s2, %d" % NWG)
    A("s_cbranch_scc1 L_end")
    if wgmap == "pm":
        A("s_lshr_b32 s%d, s2, 3" % sP)
        A("s_and_b32 s%d, s2, 7" % sS)
        A("s_lshl_b32 s%d, s2, 18" % sKO)
    else:
        A("s_and_b32 s%d, s2, 31" % sP)
        A("s_lshr_b32 s%d, s2, 5" % sS)
        A("s_lshl_b32 s%d, s%d, 21" % (sKO, sP))
        A("s_lshl_b32 s%d, s%d, 18" % (sTMP, sS))
        A("s_add_u32 s%d, s%d, s%d" % (sKO, sKO, sTMP))
    C("K lane offset: w*U*1024 + ((l%16)/4)*256 + (l%4)*16 + (l/16)*64")
    A("v_and_b32 v%d, 3, v0" % vT2)
    A("v_bfe_u32 v%d, v0, 4, 2" % vT1)
    A("v_lshlrev_b32 v%d, 6, v%d" % (vT1, vT1))
    A("v_lshl_add_u32 v%d, v%d, 4, v%d" % (vT2, vT2, vT1))
    A("v_bfe_u32 v%d, v0, 2, 2" % vT1)
    A("v_lshl_add_u32 v%d, v%d, 8, v%d" % (vKOFF, vT1, vT2))
    A("v_lshrrev_b32 v%d, 6, v0" % vT0)
    A("v_lshl_add_u32 v%d, v%d, %d, v%d" % (vKOFF, vT0, 10 + int(math.log2(U)), vKOFF))
    C("Q lane offset: h*256 + chunk, h = (l>>3)&1 ; soffset p*512")
    A("v_bfe_u32 v%d, v0, 3, 1" % vT1)
    A("v_lshl_add_u32 v%d, v%d, 8, v%d" % (vT1, vT1, vT2))
    A("s_lshl_b32 s%d, s%d, 9" % (sTMP, sP))
    A("s_mov_b32 s%d, 0x4000000" % (sK + 2))
    A("s_mov_b32 s%d, 0x20000" % (sK + 3))
    A("s_movk_i32 s%d, 0x4000" % (sQ + 2))
    A("s_mov_b32 s%d, 0x20000" % (sQ + 3))
    A("s_mov_b32 s%d, s%d" % (sVO, sKO))
    A("s_waitcnt lgkmcnt(0)")
    if st2 == 1: stamp(2)

    issued = []
    def waitfor(tag):
        idx = issued.index(tag)
        n = len(issued) - 1 - idx
        assert n <= 63
        A("s_waitcnt vmcnt(%d)" % n)
    def qload():
        if konly: A("s_waitcnt lgkmcnt(0)")
        A("buffer_load_dwordx4 v[%d:%d], v%d, s[%d:%d], s%d offen" % (vQ, vQ + 3, vT1, sQ, sQ + 3, sTMP))
        issued.append("q")
    if qpos == 0: qload()

    def slot(j): return RING + 4 * (j % R)
    cur = {0: 0, 1: 0}
    def issue(j):
        isK = j < T
        i = j if isK else j - T
        b = (i // U) * (NW * U * 1024) + (i % U) * 1024
        so = sKO if isK else sVO
        k = 0 if isK else 1
        if b - cur[k] >= 4096:
            adv = (b - cur[k]) // 4096 * 4096
            A("s_add_u32 s%d, s%d, 0x%x" % (so, so, adv))
            cur[k] += adv
        imm = b - cur[k]
        r = slot(j)
        cf = cflag.split(",")[0 if isK else -1]
        A("buffer_load_dwordx4 v[%d:%d], v%d, s[%d:%d], s%d offen%s%s" % (
            r, r + 3, vKOFF if isK else vVOFF, sK if isK else sV, (sK if isK else sV) + 3, so,
            (" offset:%d" % imm) if imm else "", (" " + cf) if cf else ""))
        issued.append(j)

    for j in range(R):
        issue(j)
        if j == 0 and konly: restptrs()
        if j == 0 and st2 == 2:
            A("s_waitcnt vmcnt(0)"); stamp(2)
        if j == qpos - 1: qload()
        if j == tpos - 1 and touch:
            C("first touch of the other buffers (address translation warm-up), values unused")
            for s_, n_ in ((sV, 0x4000000), (sOUT, 16384), (sDBG, 256), (sWS, NWG * 2048 + 4096)):
                A("s_mov_b32 s%d, 0x%x" % (s_ + 2, n_))
                A("s_mov_b32 s%d, 0x20000" % (s_ + 3))
            if "v" in touch:
                A("buffer_load_dword v%d, off, s[%d:%d], s%d nt" % (vCLR, sV, sV + 3, sVO)); issued.append("t")
            if "w" in touch:
                A("s_mov_b32 s%d, 0x%x" % (sIT, NWG * 2048)); A("buffer_load_dword v%d, off, s[%d:%d], s%d" % (vCLR, sWS, sWS + 3, sIT)); issued.append("t")
            if "d" in touch:
                A("buffer_load_dword v%d, off, s[%d:%d], 0 sc1" % (vCLR, sDBG, sDBG + 3)); issued.append("t")
            if "o" in touch:
                A("buffer_load_dword v%d, off, s[%d:%d], 0" % (vCLR, sOUT, sOUT + 3)); issued.append("t")

    C("remaining setup while loads fly")
    A("s_load_dword s%d, s[%d:%d], 0" % (sMASK, sMP, sMP + 1))
    if not touch:
        A("s_load_dwordx2 s[%d:%d], s[0:1], 48" % (sOUT, sOUT + 1))
        A("s_load_dwordx2 s[%d:%d], s[0:1], 56" % (sDBG, sDBG + 1))
        A("s_load_dwordx2 s[%d:%d], s[0:1], 64" % (sWS, sWS + 1))
    for s, n in ((sV, 0x4000000), (sKT, 8192), (sVT, 8192), (sOUT, 16384), (sDBG, 256), (sWS, NWG * 2048 + 4096)):
        A("s_mov_b32 s%d, 0x%x" % (s + 2, n))
        A("s_mov_b32 s%d, 0x20000" % (s + 3))
    if stamps:
        A("s_getreg_b32 s%d, hwreg(HW_REG_XCC_ID)" % (sST + 2))
        A("s_getreg_b32 s%d, hwreg(HW_REG_HW_ID)" % (sST + 3))
    A("v_and_b32 v%d, 63, v0" % vLANE)
    A("v_lshlrev_b32 v%d, 4, v%d" % (vVOFF, vLANE))
    A("v_lshl_add_u32 v%d, v%d, %d, v%d" % (vVOFF, vT0, 10 + int(math.log2(U)), vVOFF))
    A("v_readfirstlane_b32 s%d, v%d" % (sWV, vT0))
    C("tree tiles")
    A("s_lshl_b32 s%d, s%d, 8" % (sTMP2, sP))
    A("v_and_b32 v%d, 15, v0" % vT1)
    A("v_lshlrev_b32 v%d, 4, v%d" % (vT1, vT1))
    A("buffer_load_dwordx4 v[%d:%d], v%d, s[%d:%d], s%d offen" % (vKT, vKT + 3, vT2, sKT, sKT + 3, sTMP2))
    issued.append("kt")
    A("buffer_load_dwordx4 v[%d:%d], v%d, s[%d:%d], s%d offen" % (vVT, vVT + 3, vT1, sVT, sVT + 3, sTMP2))
    issued.append("vt")
    A("s_mov_b32 s%d, %s" % (sC, f32hex(cscale)))
    C("LDS address for stats: h*NW*4 + w*4 (h=(l>>3)&1)")
    A("v_bfe_u32 v%d, v0, 3, 1" % vT1)
    A("v_lshlrev_b32 v%d, %d, v%d" % (vT1, int(math.log2(NW * 4)), vT1))
    A("v_lshl_add_u32 v%d, v%d, 2, v%d" % (vLDSA, vT0, vT1))
    C("AND masks: reg r: (l%8)==2r -> 0xffff ; (l%8)==2r+1 -> 0xffff0000 ; else 0")
    A("v_and_b32 v%d, 1, v0" % vT0)
    A("v_lshlrev_b32 v%d, 4, v%d" % (vT0, vT0))
    A("v_mov_b32 v%d, 0xffff" % vT1)
    A("v_lshlrev_b32 v%d, v%d, v%d" % (vT1, vT0, vT1))
    A("v_bfe_u32 v%d, v0, 1, 2" % vT0)
    for r in range(4):
        A("v_cmp_eq_u32 vcc, %d, v%d" % (r, vT0))
        A("s_nop 1")
        A("v_cndmask_b32 v%d, 0, v%d, vcc" % (vMASK + r, vT1))
    for i in range(4):
        A("v_mov_b32 v%d, 0" % (vACC + i))
    A("v_lshlrev_b32 v%d, 4, v%d" % (vL16, vLANE))
    A("v_mov_b32 v%d, 1" % vTK)
    A("s_lshl_b32 s%d, s%d, 14" % (sTMP, sP))
    for i in range(8):
        A("s_xor_b32 s%d, s%d, %d" % (sSLOT + i, sS, i))
        A("s_lshl_b32 s%d, s%d, 11" % (sSLOT + i, sSLOT + i))
        A("s_add_u32 s%d, s%d, s%d" % (sSLOT + i, sSLOT + i, sTMP))
    if rep >= 0:
        A("s_lshl_b32 s%d, s%d, 2" % (sDB, sP))
        A("s_add_u32 s%d, s%d, 128" % (sDB, sDB))
    else:
        A("s_lshl_b32 s%d, s%d, 3" % (sDB, sP))
    A("s_lshl_b32 s%d, s%d, 7" % (sEPO, sP))
    A("s_add_u32 s%d, s%d, 0x%x" % (sEPO, sEPO, NWG * 2048))
    A("s_waitcnt lgkmcnt(0)")
    C("tree bias (raw score units): (1-mask)*(-1e9)/scale for tid<16 of split 0, else -inf")
    A("s_and_b32 s%d, s%d, 16" % (sTMP, sP))
    A("s_lshr_b32 s%d, s%d, s%d" % (sMASK, sMASK, sTMP))
    A("s_lshl_b32 s%d, s%d, 16" % (sMASK, sMASK))
    A("v_mov_b32 v%d, s%d" % (vBIAS, sMASK))
    A("v_sub_f32 v%d, 1.0, v%d" % (vBIAS, vBIAS))
    A("v_mul_f32 v%d, %s, v%d" % (vBIAS, f32hex(-1e9 * math.sqrt(128.0)), vBIAS))
    A("s_cmp_eq_u32 s%d, 0" % sS)
    A("s_cselect_b32 s%d, 16, 0" % sTMP)
    A("v_mov_b32 v%d, 0xff800000" % vT0)
    A("v_cmp_gt_u32 vcc, s%d, v0" % sTMP)
    A("s_nop 1")
    A("v_cndmask_b32 v%d, v%d, v%d, vcc" % (vBIAS, vT0, vBIAS))

    def dppsum(dst, d):
        A("v_mov_b32_dpp v%d, v%d quad_perm:[0,0,0,0] row_mask:0xf bank_mask:0xf" % (dst, d))
        A("v_add_f32_dpp v%d, v%d, v%d quad_perm:[1,1,1,1] row_mask:0xf bank_mask:0xf" % (dst, d + 1, dst))
        A("v_add_f32_dpp v%d, v%d, v%d quad_perm:[2,2,2,2] row_mask:0xf bank_mask:0xf" % (dst, d + 2, dst))
        A("v_add_f32_dpp v%d, v%d, v%d quad_perm:[3,3,3,3] row_mask:0xf bank_mask:0xf" % (dst, d + 3, dst))

    if only >= 0:
        A("s_and_b32 s%d, s2, 7" % sTMP)
        A("s_lshr_b32 s%d, 0x%x, s%d" % (sTMP, only, sTMP))
        A("s_bitcmp0_b32 s%d, 0" % sTMP)
        A("s_cbranch_scc1 L_dump")
    C("---- QK phase")
    pend = []
    done_s = []
    first_max = [True]
    def fold_max():
        while len(done_s) >= 2:
            a, b = done_s.pop(0), done_s.pop(0)
            if first_max[0]:
                A("v_max_f32 v%d, v%d, v%d" % (vM, a, b)); first_max[0] = False
            else:
                A("v_max3_f32 v%d, v%d, v%d, v%d" % (vM, vM, a, b))
    tree_pos = min(T - 1, R + 1)
    seq = []
    for i in range(T):
        seq.append(("k", i))
        if i == tree_pos: seq.append(("tree", T))
    for n, (kind, i) in enumerate(seq):
        d = vD[n % 4]
        if kind == "tree":
            A("v_mfma_f32_16x16x32_bf16 v[%d:%d], v[%d:%d], v[%d:%d], 0" % (d, d + 3, vKT, vKT + 3, vQ, vQ + 3))
            mpos = cnt[0]
        else:
            if i == 0 and qpos > 0: waitfor("q")
            else: waitfor(i)
            if i == 0 and st2 == 0: stamp(2)
            r = slot(i)
            A("v_mfma_f32_16x16x32_bf16 v[%d:%d], v[%d:%d], v[%d:%d], 0" % (d, d + 3, r, r + 3, vQ, vQ + 3))
            mpos = cnt[0]
            if i + R < 2 * T:
                issue(i + R)
            if i == dryat:
                C("one wave walks the gather/combine arithmetic with no lanes active (instruction fetch warm-up)")
                A("s_cmp_lg_u32 s%d, %d" % (sWV, drywave))
                A("s_cbranch_scc1 L_dry_back")
                A("s_mov_b64 exec, 0")
                A("s_mov_b64 vcc, 0")
                A("s_mov_b32 s%d, 1" % sIT)
                A("s_branch L_check")
                LBL("L_dry_back")
                A("s_mov_b64 exec, -1")
                A("s_nop 4")
        pend.append((SREG + i, d, mpos))
        if len(pend) > 2:
            dst, dd, pos = pend.pop(0)
            pad_since(pos, 8)
            dppsum(dst, dd)
            if dst == SREG + T:
                A("v_add_f32 v%d, v%d, v%d" % (dst, dst, vBIAS))
            done_s.append(dst)
            fold_max()
    assert issued.index("vt") < issued.index(tree_pos)
    for dst, dd, pos in pend:
        pad_since(pos, 8)
        dppsum(dst, dd)
        assert dst != SREG + T
        done_s.append(dst)
    fold_max()
    if done_s:
        A("v_max_f32 v%d, v%d, v%d" % (vM, vM, done_s.pop()))
    C("---- max")
    stamp(3)
    def xrow(op, v):
        A("v_mov_b32 v%d, v%d" % (vT0, v))
        A("s_nop 1")
        A("v_permlane16_swap_b32 v%d, v%d" % (v, vT0))
        A("s_nop 1")
        A("%s v%d, v%d, v%d" % (op, v, v, vT0))
        A("v_mov_b32 v%d, v%d" % (vT0, v))
        A("s_nop 1")
        A("v_permlane32_swap_b32 v%d, v%d" % (v, vT0))
        A("s_nop 1")
        A("%s v%d, v%d, v%d" % (op, v, v, vT0))
    xrow("v_max_f32", vM)
    A("ds_write_b32 v%d, v%d offset:%d" % (vLDSA, vM, OFF_M))
    A("v_bfe_u32 v%d, v0, 3, 1" % vT1)
    A("v_lshlrev_b32 v%d, %d, v%d" % (vT1, int(math.log2(NW * 4)), vT1))
    A("s_waitcnt lgkmcnt(0)")
    A("s_barrier")
    nq = NW // 4
    for q in range(nq):
        A("ds_read_b128 v[%d:%d], v%d offset:%d" % (vD[q], vD[q] + 3, vT1, OFF_M + 16 * q))
    A("s_waitcnt lgkmcnt(0)")
    regs = [vD[q] + i for q in range(nq) for i in range(4)]
    for k in range(0, len(regs), 2):
        A("v_max3_f32 v%d, v%d, v%d, v%d" % (vM, vM, regs[k], regs[k + 1]))
    A("v_mul_f32 v%d, s%d, v%d" % (vM, sC, vM))
    A("v_sub_f32 v%d, 0, v%d" % (vNMC, vM))
    C("---- exp (software-pipelined into the PV loop)")
    def expo(i):
        A("v_fma_f32 v%d, v%d, s%d, v%d" % (SREG + i, SREG + i, sC, vNMC))
        A("v_exp_f32 v%d, v%d" % (SREG + i, SREG + i))
    lfirst = [True]
    def fin(i):
        if lfirst[0]:
            A("v_mov_b32 v%d, v%d" % (vL, SREG + i)); lfirst[0] = False
        else:
            A("v_add_f32 v%d, v%d, v%d" % (vL, vL, SREG + i))
        A("v_cvt_pk_bf16_f32 v%d, v%d, v%d" % (SREG + i, SREG + i, SREG + i))
    def expand(i, n):
        p = vD[n % 4]
        for r in range(4):
            A("v_and_b32 v%d, v%d, v%d" % (p + r, SREG + i, vMASK + r))
    seq = [("tree", T)] + [("v", i) for i in range(T)]
    NS = len(seq)
    e_next = [0]; f_next = [0]
    def run_exp(k):
        for _ in range(k):
            if e_next[0] < NS:
                expo(seq[e_next[0]][1]); e_next[0] += 1
    def run_fin(upto):
        while f_next[0] < min(upto, NS):
            fin(seq[f_next[0]][1]); f_next[0] += 1
    run_exp(4)
    run_fin(3)
    expand(seq[0][1], 0)
    expand(seq[1][1], 1)
    l_done = [False]
    vOA = vKT
    SETB = RING
    assert 56 <= 4 * R
    def polls(SET):
        for i in range(1, 8):
            for g in range(2):
                r = SET + 8 * (i - 1) + 4 * g
                A("buffer_load_dwordx4 v[%d:%d], v%d, s[%d:%d], s%d offen%s %s" % (r, r + 3, vL16, sWS, sWS + 3, sSLOT + i, " offset:1024" if g else "", pld))
    mp = [0]
    def pvstep(n):
        kind, i = seq[n]
        p = vD[n % 4]
        if kind == "tree":
            r = vVT
        else:
            waitfor(T + i)
            r = slot(T + i)
        A("v_mfma_f32_16x16x32_bf16 v[%d:%d], v[%d:%d], v[%d:%d], v[%d:%d]" % (vACC, vACC + 3, p, p + 3, r, r + 3, vACC, vACC + 3))
        mp[0] = cnt[0]
        if kind != "tree" and T + i + R < 2 * T:
            issue(T + i + R)
        if n == epat:
            C("wave 0: hand-off generation word of this pair (tells this launch's records from older ones)")
            A("s_cmp_lg_u32 s%d, 0" % sWV)
            A("s_cbranch_scc1 L_skip_ep")
            A("buffer_load_dword v%d, off, s[%d:%d], s%d sc1" % (vEP, sWS, sWS + 3, sEPO))
            if warm.startswith("ld"):
                fl = warm[2:].strip()
                A("buffer_load_dwordx4 v[%d:%d], v%d, s[%d:%d], s%d offen %s" % (vKT, vKT + 3, vL16, sWS, sWS + 3, sSLOT, fl))
                A("buffer_load_dwordx4 v[%d:%d], v%d, s[%d:%d], s%d offen offset:1024 %s" % (vKT, vKT + 3, vL16, sWS, sWS + 3, sSLOT, fl))
            if warm.startswith("st"):
                fl = warm[2:].strip()
                A("buffer_store_dwordx4 v[%d:%d], v%d, s[%d:%d], s%d offen %s" % (vMASK, vMASK + 3, vL16, sWS, sWS + 3, sSLOT, fl))
                A("buffer_store_dwordx4 v[%d:%d], v%d, s[%d:%d], s%d offen offset:1024 %s" % (vMASK, vMASK + 3, vL16, sWS, sWS + 3, sSLOT, fl))
            LBL("L_skip_ep")
            assert n + R + 2 < NS - KT
        had = e_next[0]
        run_exp(2)
        run_fin(had if e_next[0] > had else NS)
        if had == e_next[0] and f_next[0] == NS and not l_done[0]:
            l_done[0] = True
            xrow("v_add_f32", vL)
            A("ds_write_b32 v%d, v%d offset:%d" % (vLDSA, vL, OFF_L))
            C("epilogue addresses")
            A("v_lshlrev_b32 v%d, 4, v0" % vT0)
            A("v_lshrrev_b32 v%d, 5, v%d" % (vT2, vLANE))
            A("v_lshlrev_b32 v%d, 8, v%d" % (vOA, vT2))
            A("v_lshlrev_b32 v%d, %d, v%d" % (vT2, int(math.log2(NW * 4)), vT2))
            C("M for head h' = lane/32 (scaled): lanes 0 / 8 hold heads 0 / 1")
            A("v_readlane_b32 s%d, v%d, 0" % (sTMP, vM))
            A("v_readlane_b32 s%d, v%d, 8" % (sTMP2, vM))
            A("v_cmp_gt_u32 vcc, 32, v%d" % vLANE)
            A("v_mov_b32 v%d, s%d" % (vT1, sTMP))
            A("v_mov_b32 v%d, s%d" % (vG + 6, sTMP2))
            A("v_cndmask_b32 v%d, v%d, v%d, vcc" % (vG + 2, vG + 6, vT1))
            C("out byte offset: p*512 + h'*256 + (l%16)*16 + ((l>>4)&1)*8")
            A("v_and_b32 v%d, 15, v%d" % (vT1, vLANE))
            A("v_lshl_add_u32 v%d, v%d, 4, v%d" % (vOA, vT1, vOA))
            A("v_bfe_u32 v%d, v%d, 4, 1" % (vT1, vLANE))
            A("v_lshl_add_u32 v%d, v%d, 3, v%d" % (vOA, vT1, vOA))
            A("s_lshl_b32 s%d, s%d, 9" % (sTMP2, sP))
        if n + 2 < NS:
            assert f_next[0] > n + 2
            expand(seq[n + 2][1], n + 2)
    for n in range(NS):
        if n == NS - KT:
            assert l_done[0]
            C("wave 0: arrival ticket of this split")
            A("s_cmp_lg_u32 s%d, 0" % sWV)
            A("s_cbranch_scc1 L_skip_tk")
            A("v_readfirstlane_b32 s%d, v%d" % (sTAG, vEP))
            A("s_mov_b64 exec, 1")
            A("buffer_atomic_add v%d, off, s[%d:%d], s%d sc0 sc1" % (vTK, sDBG, sDBG + 3, sDB))
            A("s_mov_b64 exec, -1")
            A("s_mul_i32 s%d, s%d, 0x9e3779b1" % (sTAG, sTAG))
            A("s_add_u32 s%d, s%d, 0x7f4a7c15" % (sTAG, sTAG))
            A("s_movk_i32 s%d, 0x7fff" % sIT)
            A("v_mov_b32 v%d, s%d" % (vG + 3, sTAG))
            A("v_mov_b32 v%d, s%d" % (vG + 7, sTAG))
            LBL("L_skip_tk")
        pvstep(n)
    ENDL = "L_dump" if stamps else "L_end"
    stamp(4)
    A("s_cmp_eq_u32 s%d, 0" % sWV)
    A("s_cbranch_scc1 L_w0")
    C("---- waves 1..3: hand the sums to wave 0")
    pad_since(mp[0], 8)
    A("ds_write_b128 v%d, v[%d:%d] offset:%d" % (vT0, vACC, vACC + 3, OFF_O))
    A("s_waitcnt lgkmcnt(0)")
    A("s_barrier")
    if dryend:
        A("s_mov_b64 exec, 0")
        A("s_mov_b64 vcc, 0")
        A("s_mov_b32 s%d, 0" % sIT)
        A("s_branch L_check")
    elif stamps: A("s_branch L_dump")
    else: A("s_endpgm")
    LBL("L_w0")
    def reduce_own():
        B0 = 4
        for w in range(1, NW):
            A("ds_read_b128 v[%d:%d], v%d offset:%d" % (B0 + 4 * w, B0 + 4 * w + 3, vL16, OFF_O + 1024 * w))
        BL = B0 + 4 * NW
        A("ds_read_b128 v[%d:%d], v%d offset:%d" % (BL, BL + 3, vT2, OFF_L))
        pad_since(mp[0], 8)
        for w in range(1, NW):
            A("s_waitcnt lgkmcnt(%d)" % ((NW - 1 - w) + 1))
            for hh in (0, 2):
                d = vACC + hh if w < NW - 1 else vG + 2 * hh
                A("v_pk_add_f32 v[%d:%d], v[%d:%d], v[%d:%d]" % (d, d + 1, vACC + hh, vACC + hh + 1, B0 + 4 * w + hh, B0 + 4 * w + hh + 1))
        return BL
    def lsum(BL):
        A("s_waitcnt lgkmcnt(0)")
        A("v_pk_add_f32 v[%d:%d], v[%d:%d], v[%d:%d]" % (BL, BL + 1, BL, BL + 1, BL + 2, BL + 3))
        A("v_add_f32 v%d, v%d, v%d" % (vG + 6, BL, BL + 1))
    def publish():
        BL = reduce_own()
        A("buffer_store_dwordx4 v[%d:%d], v%d, s[%d:%d], s%d offen %s" % (vG, vG + 3, vL16, sWS, sWS + 3, sSLOT, pst))
        lsum(BL)
        A("buffer_store_dwordx4 v[%d:%d], v%d, s[%d:%d], s%d offen offset:1024 %s" % (vG + 4, vG + 7, vL16, sWS, sWS + 3, sSLOT, pst))
    def check(SET, lbl):
        for i in range(7):
            A("v_bitop3_b32 v%d, v%d, v%d, s%d bitop3:0x7e" % (8 + i, SET + 8 * i + 3, SET + 8 * i + 7, sTAG))
        A("v_or3_b32 v8, v8, v9, v10")
        A("v_or3_b32 v11, v11, v12, v13")
        A("v_or3_b32 v8, v8, v11, v14")
        A("v_cmp_ne_u32 vcc, 0, v8")
        A("s_cbranch_vccnz L_repoll")
    def combine(SET):
        G = [vG] + [SET + 8 * i for i in range(7)]
        A("v_max3_f32 v8, v%d, v%d, v%d" % (G[0] + 2, G[1] + 2, G[2] + 2))
        A("v_max3_f32 v9, v%d, v%d, v%d" % (G[3] + 2, G[4] + 2, G[5] + 2))
        A("v_max3_f32 v8, v8, v%d, v%d" % (G[6] + 2, G[7] + 2))
        A("v_max_f32 v8, v8, v9")
        for s in range(8):
            A("v_sub_f32 v%d, v%d, v8" % (G[s] + 2, G[s] + 2))
            A("v_exp_f32 v%d, v%d" % (G[s] + 2, G[s] + 2))
        for s in range(8):
            A("v_mul_f32 v%d, v%d, v%d" % (G[s] + 6, G[s] + 2, G[s] + 6))
        for st in (1, 2, 4):
            for s in range(0, 8, 2 * st):
                A("v_add_f32 v%d, v%d, v%d" % (G[s] + 6, G[s] + 6, G[s + st] + 6))
        A("v_rcp_f32 v8, v%d" % (G[0] + 6))
        for s in range(8):
            for hh in (0, 4):
                A("v_pk_mul_f32 v[%d:%d], v[%d:%d], v[%d:%d] op_sel_hi:[1,0]" % (G[s] + hh, G[s] + hh + 1, G[s] + hh, G[s] + hh + 1, G[s] + 2, G[s] + 3))
        for st in (1, 2, 4):
            for s in range(0, 8, 2 * st):
                for hh in (0, 4):
                    A("v_pk_add_f32 v[%d:%d], v[%d:%d], v[%d:%d]" % (G[s] + hh, G[s] + hh + 1, G[s] + hh, G[s] + hh + 1, G[s + st] + hh, G[s + st] + hh + 1))
        A("s_branch L_fin")
    C("only the holder of the last ticket gathers; the others publish")
    A("v_readfirstlane_b32 s%d, v%d" % (sTMP, vTK))
    A("s_cmp_lg_u32 s%d, %d" % (sTMP, NSPLIT - 1))
    A("s_cbranch_scc1 L_nopoll")
    polls(SETB)
    LBL("L_nopoll")
    A("s_barrier")
    stamp(5)
    mp[0] = cnt[0] - 6
    BL = reduce_own()
    A("s_cbranch_scc0 L_last")
    A("buffer_store_dwordx4 v[%d:%d], v%d, s[%d:%d], s%d offen %s" % (vG, vG + 3, vL16, sWS, sWS + 3, sSLOT, pst))
    lsum(BL)
    A("buffer_store_dwordx4 v[%d:%d], v%d, s[%d:%d], s%d offen offset:1024 %s" % (vG + 4, vG + 7, vL16, sWS, sWS + 3, sSLOT, pst))
    stamp(6)
    if stamps: A("s_branch L_dump")
    else: A("s_endpgm")
    LBL("L_last")
    lsum(BL)
    LBL("L_wait")
    A("s_waitcnt vmcnt(0)")
    stamp(6)
    LBL("L_check")
    check(SETB, None)
    LBL("L_comb")
    combine(SETB)
    L.pop()
    A("v_pk_mul_f32 v[%d:%d], v[%d:%d], v[8:9] op_sel_hi:[1,0]" % (vG, vG + 1, vG, vG + 1))
    A("v_pk_mul_f32 v[%d:%d], v[%d:%d], v[8:9] op_sel_hi:[1,0]" % (vG + 4, vG + 5, vG + 4, vG + 5))
    A("v_cvt_pk_bf16_f32 v16, v%d, v%d" % (vG, vG + 1))
    A("v_cvt_pk_bf16_f32 v17, v%d, v%d" % (vG + 4, vG + 5))
    if dryend or dryat >= 0:
        A("s_cbranch_execz L_dryexit")
    A("buffer_store_dwordx2 v[16:17], v%d, s[%d:%d], s%d offen%s" % (vOA, sOUT, sOUT + 3, sTMP2, (" " + ost) if ost else ""))
    C("advance the generation word")
    A("s_mov_b64 exec, 1")
    A("buffer_store_dword v%d, off, s[%d:%d], s%d sc1" % (vG + 7, sWS, sWS + 3, sEPO))
    if stamps:
        A("s_waitcnt vmcnt(0)")
        stamp(7)
        LBL("L_dump")
        A("s_waitcnt vmcnt(0) lgkmcnt(0)")
        A("s_mov_b64 exec, 1")
        if rep >= 0:
            def spin(lbl, sreg):
                LBL(lbl)
                A("s_sleep 4")
                A("s_memrealtime s[%d:%d]" % (sMP, sMP + 1))
                A("s_waitcnt lgkmcnt(0)")
                A("s_sub_u32 s%d, s%d, s%d" % (sTMP2, sMP, sST))
                A("s_cmp_lt_u32 s%d, s%d" % (sTMP2, sreg))
                A("s_cbranch_scc1 %s" % lbl)
            A("s_memrealtime s[%d:%d]" % (sST + 12, sST + 13))
            A("s_movk_i32 s%d, 4000" % sTMP)
            spin("L_sp1", sTMP)
            A("s_and_b32 s%d, s%d, 7" % (sIT, sST + 2))
            A("s_not_b32 s%d, s%d" % (sTMP, sST))
            A("s_not_b32 s%d, s%d" % (sTAG, sST + 8))
            vals = [(sTMP, "x0"), (sST + 8, "x8"), (sTMP, 16), (sST, 17), (sST + 8, 18), (sST + 12, 19), (sST + 6, 20), (sTAG, 21)]
            for ln, (sv, dw) in enumerate(vals):
                A("v_writelane_b32 v12, s%d, %d" % (sv, ln))
                if isinstance(dw, str):
                    A("s_add_u32 s%d, s%d, %d" % (sTMP2, sIT, int(dw[1:])))
                    A("s_lshl_b32 s%d, s%d, 2" % (sTMP2, sTMP2))
                else:
                    A("s_movk_i32 s%d, %d" % (sTMP2, 4 * dw))
                A("v_writelane_b32 v13, s%d, %d" % (sTMP2, ln))
            A("s_mov_b64 exec, 0x%x" % ((1 << len(vals)) - 1))
            A("s_nop 4")
            A("buffer_atomic_umax v12, v13, s[%d:%d], 0 offen sc1" % (sDBG, sDBG + 3))
            A("s_mov_b64 exec, 1")
            A("s_sub_u32 s%d, s%d, s%d" % (sTMP, sST + 8, sST))
            A("v_mov_b32 v14, s%d" % sTMP)
            A("buffer_atomic_add v14, off, s[%d:%d], 0 offset:88 sc1" % (sDBG, sDBG + 3))
            A("s_or_b32 s%d, s2, s%d" % (sTMP, sWV))
            A("s_cmp_lg_u32 s%d, 0" % sTMP)
            A("s_cbranch_scc1 L_end")
            A("s_movk_i32 s%d, 15000" % sTMP)
            spin("L_sp2", sTMP)
            A("buffer_load_dword v12, off, s[%d:%d], 0 offset:%d sc0 sc1" % (sDBG, sDBG + 3, 4 * rep))
            A("buffer_load_dword v13, off, s[%d:%d], 0 offset:%d sc0 sc1" % (sDBG, sDBG + 3, 4 * repb))
            A("s_waitcnt vmcnt(0)")
            A("v_readfirstlane_b32 s%d, v12" % sTMP)
            A("v_readfirstlane_b32 s%d, v13" % sTMP2)
            if rep == 22:
                A("s_lshr_b32 s%d, s%d, 10" % (sTMP, sTMP))
            elif rep in (0, 1, 2, 3, 4, 5, 6, 7, 16, 21):
                A("s_sub_u32 s%d, s%d, s%d" % (sTMP, sTMP2, sTMP))
            else:
                A("s_add_u32 s%d, s%d, s%d" % (sTMP, sTMP, sTMP2))
                A("s_add_u32 s%d, s%d, 1" % (sTMP, sTMP))
            A("s_min_u32 s%d, s%d, 5000" % (sTMP, sTMP))
            A("s_mul_i32 s%d, s%d, %d" % (sTMP, sTMP, ampk))
            A("s_add_u32 s%d, s%d, 16000" % (sTMP, sTMP))
            spin("L_sp3", sTMP)
            A("s_endpgm")
        if amp >= 0:
            if amp == 8:
                A("s_memrealtime s[%d:%d]" % (sST + 2, sST + 3))
                A("s_waitcnt lgkmcnt(0)")
            k = 1 if amp == 8 else amp
            A("s_cmp_eq_u32 s%d, 0" % (sST + 2 * k))
            A("s_cbranch_scc1 L_end")
            A("s_sub_u32 s%d, s%d, s%d" % (sTMP, sST + 2 * k, sST))
            A("s_min_u32 s%d, s%d, 5000" % (sTMP, sTMP))
            A("s_mul_i32 s%d, s%d, %d" % (sTMP, sTMP, ampk))
            LBL("L_spin")
            A("s_sleep 2")
            A("s_memrealtime s[%d:%d]" % (sST + 2, sST + 3))
            A("s_waitcnt lgkmcnt(0)")
            A("s_sub_u32 s%d, s%d, s%d" % (sTMP2, sST + 2, sST))
            A("s_cmp_lt_u32 s%d, s%d" % (sTMP2, sTMP))
            A("s_cbranch_scc1 L_spin")
            A("s_endpgm")
        if hst:
            for dw, k, neg in ((1, 0, 1), (3, 0, 0), (5, 2, 1), (7, 2, 0), (9, 3, 0), (11, 4, 1), (13, 4, 0), (15, 7, 0)):
                if neg:
                    A("s_not_b32 s%d, s%d" % (sTMP, sST + 2 * k))
                    A("v_mov_b32 v12, s%d" % sTMP)
                else:
                    A("v_mov_b32 v12, s%d" % (sST + 2 * k))
                A("buffer_atomic_umax v12, off, s[%d:%d], 0 offset:%d sc1" % (sDBG, sDBG + 3, 4 * dw))
                A("s_nop 2")
            A("s_endpgm")
        A("s_mov_b32 s%d, 0x10000000" % (sWS + 2))
        A("s_lshl_b32 s%d, s2, %d" % (sTMP, int(math.log2(NW)) + 6))
        A("s_lshl_b32 s%d, s%d, 6" % (sTMP2, sWV))
        A("s_add_u32 s%d, s%d, s%d" % (sTMP, sTMP, sTMP2))
        A("s_add_u32 s%d, s%d, 0x1000000" % (sTMP, sTMP))
        A("v_mov_b32 v11, 0")
        for k in range(4):
            for i in range(4):
                A("v_mov_b32 v%d, s%d" % (12 + i, sST + 4 * k + i))
            A("buffer_store_dwordx4 v[12:15], v11, s[%d:%d], s%d offen offset:%d" % (sWS, sWS + 3, sTMP, 16 * k))
            A("s_nop 2")
    LBL("L_end")
    A("s_endpgm")
    LBL("L_repoll")
    polls(SETB)
    A("s_sub_u32 s%d, s%d, 1" % (sIT, sIT))
    A("s_cmp_lg_u32 s%d, 0" % sIT)
    A("s_cbranch_scc1 L_wait")
    A("s_waitcnt vmcnt(0)")
    A("s_branch L_comb")
    if dryend or dryat >= 0:
        LBL("L_dryexit")
        if dryat >= 0:
            A("s_cmp_eq_u32 s%d, 1" % sIT)
            A("s_cbranch_scc1 L_dry_back")
        if stamps: A("s_branch L_dump")
        else: A("s_endpgm")

    out = HEADER
    out += "; @launch grid=(%d,1,1) block=(%d,1,1) lds=%d\n" % (NWG, NW * 64, LDS)
    out += '.amdgcn_target "amdgcn-amd-amdhsa--gfx950"\n.text\n'
    out += ".globl %s_kernel\n.p2align 8\n.type %s_kernel,@function\n%s_kernel:\n" % (NAME, NAME, NAME)
    out += "\n".join(L) + "\n"
    out += '.section .rodata,"a"\n.p2align 6\n.amdhsa_kernel %s_kernel\n' % NAME
    out += "  .amdhsa_next_free_vgpr %d\n  .amdhsa_next_free_sgpr %d\n  .amdhsa_accum_offset %d\n" % (total_v, 96 if stamps else 64, total_v)
    out += "  .amdhsa_group_segment_fixed_size 0\n  .amdhsa_kernarg_size 72\n  .amdhsa_user_sgpr_count 2\n"
    out += "  .amdhsa_user_sgpr_kernarg_segment_ptr 1\n  .amdhsa_system_sgpr_workgroup_id_x 1\n"
    out += "  .amdhsa_float_denorm_mode_32 3\n"
    out += ".end_amdhsa_kernel\n"
    return out

if __name__ == "__main__":
    names = []
    for spec in sys.argv[1:]:
        kw = {}
        main = False
        for kv in spec.split(","):
            if kv == "MAIN": main = True; continue
            k, v = kv.split("=")
            kw[k] = int(v) if v.lstrip("-").isdigit() else v.replace("+", " ")
        n = "var/g5_" + spec.replace(",", "_").replace("=", "").replace("+", "") + ".s"
        if main: n = "cdna_kernels/%s.s" % NAME
        open("code/" + n, "w").write(gen(**kw))
        names.append(n)
    print(" ".join(names))
    print(str(["bench/bench.py", "bench/flush.s", "bench/icev.s", "cdna_kernels/cdna_launch.py", "cdna_kernels/cdna_unwritten_srd_check.py"] + names).replace("'", '"'))
    print(str(names).replace("'", '"'))
```

```python
import sys, math, struct

NAME = "standalone__tree_speculative_verify_tree_attention_over_candidate_token_tree__decode"

HEADER = """; Kernarg layout for this problem (72 bytes, ptrs only, base s[0:1]):
;   offset   0: d_in[0] q  shape=(2, 32, 1, 128) dtype=bfloat16 strides=(8192, 256, 256, 2) contiguous=True
;   offset   8: d_in[1] k_cache  shape=(2, 16, 8192, 128) dtype=bfloat16 strides=(33554432, 2097152, 256, 2) contiguous=True
;   offset  16: d_in[2] v_cache  shape=(2, 16, 8192, 128) dtype=bfloat16 strides=(33554432, 2097152, 256, 2) contiguous=True
;   offset  24: d_in[3] k_tree  shape=(2, 16, 1, 128) dtype=bfloat16 strides=(4096, 256, 256, 2) contiguous=True
;   offset  32: d_in[4] v_tree  shape=(2, 16, 1, 128) dtype=bfloat16 strides=(4096, 256, 256, 2) contiguous=True
;   offset  40: d_in[5] tree_mask  shape=(2, 1, 1) dtype=bfloat16 strides=(2, 2, 2) contiguous=True
;   offset  64: d_ws      268435456 bytes workspace (unspecified values whenever your kernel or launch list starts; a list's later launches find what earlier ones wrote)
"""

def f32hex(x):
    return "0x%08x" % struct.unpack("<I", struct.pack("<f", x))[0]

def gen(NW=4, R=24, U=1, cflag="nt", wgmap="sm", stamps=0, lds_extra=0, KT=8, pst="sc1", pld="sc1", ost="", epat=2, epw="end", bwarm=0, force=0, st2=0, qpos=0, konly=0, dryend=0, dryat=-1, drywave=3, warm="ld", only=-1, hst=0, amp=-1, ampk=5, rep=-1, repb=16, al=13, cp=0):
    touch = ""; tpos = 0
    NSPLIT = 8
    NWG = 32 * NSPLIT
    T = 8192 // NSPLIT // NW // 4
    L = []
    cnt = [0]
    def A(s):
        L.append("    " + s)
        m = s.split()
        cnt[0] += (int(m[1]) + 1) if m[0] == "s_nop" else 1
    def pad_since(pos, need):
        have = cnt[0] - pos
        if have < need:
            A("s_nop %d" % (need - have - 1))
    def C(s): L.append("    ; " + s)
    def LBL(s): L.append(s + ":")

    vKOFF, vVOFF = 1, 2
    vT0, vT1, vT2 = 3, 36, 37
    vQ = 4
    vD = [8, 12, 16, 20]
    vKT, vVT = 24, 28
    vMASK = 32
    vBIAS, vL, vACC, vLANE, vLDSA, vM, vNMC = 38, 39, 40, 44, 45, 46, 47
    vG, vL16, vTK, vEP, vPOFF = 48, 56, 57, 38, 58
    vCLR = vEP
    SREG = 59
    RING = (SREG + T + 1 + 3) // 4 * 4
    total_v = (RING + 4 * R + 7) // 8 * 8
    assert total_v <= 256

    OFF_M, OFF_L, OFF_O = 0, 128, 256
    LDS = OFF_O + NW * 1024 + lds_extra
    cscale = (128 ** -0.5) * math.log2(math.e)

    sK, sV, sQ, sKT, sVT, sOUT, sDBG, sWS = 4, 8, 12, 16, 20, 24, 28, 32
    sMP = 36
    sP, sS, sWV, sMASK, sC, sTMP, sTMP2, sKO, sVO = 40, 41, 42, 43, 44, 45, 46, 47, 48
    sSLOT = 50
    sDB, sTAG, sIT, sEPO, sFAST = 58, 59, 60, 61, 62
    sST = 64
    def stamp(k):
        if stamps:
            A("s_memrealtime s[%d:%d]" % (sST + 2 * k, sST + 2 * k + 1))

    if stamps:
        for k in range(16):
            A("s_mov_b32 s%d, 0" % (sST + k))
        stamp(0)
    A("s_load_dwordx2 s[%d:%d], s[0:1], 8" % (sK, sK + 1))
    def restptrs():
        A("s_load_dwordx2 s[%d:%d], s[0:1], 0" % (sQ, sQ + 1))
        A("s_load_dwordx2 s[%d:%d], s[0:1], 16" % (sV, sV + 1))
        A("s_load_dwordx2 s[%d:%d], s[0:1], 24" % (sKT, sKT + 1))
        A("s_load_dwordx2 s[%d:%d], s[0:1], 32" % (sVT, sVT + 1))
        A("s_load_dwordx2 s[%d:%d], s[0:1], 40" % (sMP, sMP + 1))
    if not konly: restptrs()
    else: assert qpos > 0
    if touch:
        A("s_load_dwordx2 s[%d:%d], s[0:1], 48" % (sOUT, sOUT + 1))
        A("s_load_dwordx2 s[%d:%d], s[0:1], 56" % (sDBG, sDBG + 1))
        A("s_load_dwordx2 s[%d:%d], s[0:1], 64" % (sWS, sWS + 1))
    A("s_cmp_ge_u32 s2, %d" % NWG)
    A("s_cbranch_scc1 L_end")
    if wgmap == "pm":
        A("s_lshr_b32 s%d, s2, 3" % sP)
        A("s_and_b32 s%d, s2, 7" % sS)
        A("s_lshl_b32 s%d, s2, 18" % sKO)
    else:
        A("s_and_b32 s%d, s2, 31" % sP)
        A("s_lshr_b32 s%d, s2, 5" % sS)
        A("s_lshl_b32 s%d, s%d, 21" % (sKO, sP))
        A("s_lshl_b32 s%d, s%d, 18" % (sTMP, sS))
        A("s_add_u32 s%d, s%d, s%d" % (sKO, sKO, sTMP))
    C("K lane offset: w*U*1024 + ((l%16)/4)*256 + (l%4)*16 + (l/16)*64")
    A("v_and_b32 v%d, 3, v0" % vT2)
    A("v_bfe_u32 v%d, v0, 4, 2" % vT1)
    A("v_lshlrev_b32 v%d, 6, v%d" % (vT1, vT1))
    A("v_lshl_add_u32 v%d, v%d, 4, v%d" % (vT2, vT2, vT1))
    A("v_bfe_u32 v%d, v0, 2, 2" % vT1)
    A("v_lshl_add_u32 v%d, v%d, 8, v%d" % (vKOFF, vT1, vT2))
    A("v_lshrrev_b32 v%d, 6, v0" % vT0)
    A("v_lshl_add_u32 v%d, v%d, %d, v%d" % (vKOFF, vT0, 10 + int(math.log2(U)), vKOFF))
    C("Q lane offset: h*256 + chunk, h = (l>>3)&1 ; soffset p*512")
    A("v_bfe_u32 v%d, v0, 3, 1" % vT1)
    A("v_lshl_add_u32 v%d, v%d, 8, v%d" % (vT1, vT1, vT2))
    A("s_lshl_b32 s%d, s%d, 9" % (sTMP, sP))
    A("s_mov_b32 s%d, 0x4000000" % (sK + 2))
    A("s_mov_b32 s%d, 0x20000" % (sK + 3))
    A("s_movk_i32 s%d, 0x4000" % (sQ + 2))
    A("s_mov_b32 s%d, 0x20000" % (sQ + 3))
    A("s_mov_b32 s%d, s%d" % (sVO, sKO))
    A("s_waitcnt lgkmcnt(0)")
    if st2 == 1: stamp(2)

    issued = []
    def waitfor(tag):
        idx = issued.index(tag)
        n = len(issued) - 1 - idx
        assert n <= 63
        A("s_waitcnt vmcnt(%d)" % n)
    def qload():
        if konly: A("s_waitcnt lgkmcnt(0)")
        A("buffer_load_dwordx4 v[%d:%d], v%d, s[%d:%d], s%d offen" % (vQ, vQ + 3, vT1, sQ, sQ + 3, sTMP))
        issued.append("q")
    if qpos == 0: qload()

    def slot(j): return RING + 4 * (j % R)
    cur = {0: 0, 1: 0}
    def issue(j):
        isK = j < T
        i = j if isK else j - T
        b = (i // U) * (NW * U * 1024) + (i % U) * 1024
        so = sKO if isK else sVO
        k = 0 if isK else 1
        if b - cur[k] >= 4096:
            adv = (b - cur[k]) // 4096 * 4096
            A("s_add_u32 s%d, s%d, 0x%x" % (so, so, adv))
            cur[k] += adv
        imm = b - cur[k]
        r = slot(j)
        cf = cflag.split(",")[0 if isK else -1]
        A("buffer_load_dwordx4 v[%d:%d], v%d, s[%d:%d], s%d offen%s%s" % (
            r, r + 3, vKOFF if isK else vVOFF, sK if isK else sV, (sK if isK else sV) + 3, so,
            (" offset:%d" % imm) if imm else "", (" " + cf) if cf else ""))
        issued.append(j)

    for j in range(R):
        issue(j)
        if j == 0 and konly: restptrs()
        if j == 0 and st2 == 2:
            A("s_waitcnt vmcnt(0)"); stamp(2)
        if j == qpos - 1: qload()
        if j == tpos - 1 and touch:
            C("first touch of the other buffers (address translation warm-up), values unused")
            for s_, n_ in ((sV, 0x4000000), (sOUT, 16384), (sDBG, 256), (sWS, NWG * 4096 + 4096)):
                A("s_mov_b32 s%d, 0x%x" % (s_ + 2, n_))
                A("s_mov_b32 s%d, 0x20000" % (s_ + 3))
            if "v" in touch:
                A("buffer_load_dword v%d, off, s[%d:%d], s%d nt" % (vCLR, sV, sV + 3, sVO)); issued.append("t")
            if "w" in touch:
                A("s_mov_b32 s%d, 0x%x" % (sIT, NWG * 4096)); A("buffer_load_dword v%d, off, s[%d:%d], s%d" % (vCLR, sWS, sWS + 3, sIT)); issued.append("t")
            if "d" in touch:
                A("buffer_load_dword v%d, off, s[%d:%d], 0 sc1" % (vCLR, sDBG, sDBG + 3)); issued.append("t")
            if "o" in touch:
                A("buffer_load_dword v%d, off, s[%d:%d], 0" % (vCLR, sOUT, sOUT + 3)); issued.append("t")

    C("remaining setup while loads fly")
    A("s_load_dword s%d, s[%d:%d], 0" % (sMASK, sMP, sMP + 1))
    if not touch:
        A("s_load_dwordx2 s[%d:%d], s[0:1], 48" % (sOUT, sOUT + 1))
        A("s_load_dwordx2 s[%d:%d], s[0:1], 56" % (sDBG, sDBG + 1))
        A("s_load_dwordx2 s[%d:%d], s[0:1], 64" % (sWS, sWS + 1))
    for s, n in ((sV, 0x4000000), (sKT, 8192), (sVT, 8192), (sOUT, 16384), (sDBG, 256), (sWS, NWG * 4096 + 4096)):
        A("s_mov_b32 s%d, 0x%x" % (s + 2, n))
        A("s_mov_b32 s%d, 0x20000" % (s + 3))
    if stamps:
        A("s_getreg_b32 s%d, hwreg(HW_REG_XCC_ID)" % (sST + 2))
        A("s_getreg_b32 s%d, hwreg(HW_REG_HW_ID)" % (sST + 3))
    A("v_and_b32 v%d, 63, v0" % vLANE)
    A("v_lshlrev_b32 v%d, 4, v%d" % (vVOFF, vLANE))
    A("v_lshl_add_u32 v%d, v%d, %d, v%d" % (vVOFF, vT0, 10 + int(math.log2(U)), vVOFF))
    A("v_readfirstlane_b32 s%d, v%d" % (sWV, vT0))
    C("tree tiles")
    A("s_lshl_b32 s%d, s%d, 8" % (sTMP2, sP))
    A("v_and_b32 v%d, 15, v0" % vT1)
    A("v_lshlrev_b32 v%d, 4, v%d" % (vT1, vT1))
    A("buffer_load_dwordx4 v[%d:%d], v%d, s[%d:%d], s%d offen" % (vKT, vKT + 3, vT2, sKT, sKT + 3, sTMP2))
    issued.append("kt")
    A("buffer_load_dwordx4 v[%d:%d], v%d, s[%d:%d], s%d offen" % (vVT, vVT + 3, vT1, sVT, sVT + 3, sTMP2))
    issued.append("vt")
    A("s_mov_b32 s%d, %s" % (sC, f32hex(cscale)))
    C("LDS address for stats: h*NW*4 + w*4 (h=(l>>3)&1)")
    A("v_bfe_u32 v%d, v0, 3, 1" % vT1)
    A("v_lshlrev_b32 v%d, %d, v%d" % (vT1, int(math.log2(NW * 4)), vT1))
    A("v_lshl_add_u32 v%d, v%d, 2, v%d" % (vLDSA, vT0, vT1))
    C("AND masks: reg r: (l%8)==2r -> 0xffff ; (l%8)==2r+1 -> 0xffff0000 ; else 0")
    A("v_and_b32 v%d, 1, v0" % vT0)
    A("v_lshlrev_b32 v%d, 4, v%d" % (vT0, vT0))
    A("v_mov_b32 v%d, 0xffff" % vT1)
    A("v_lshlrev_b32 v%d, v%d, v%d" % (vT1, vT0, vT1))
    A("v_bfe_u32 v%d, v0, 1, 2" % vT0)
    for r in range(4):
        A("v_cmp_eq_u32 vcc, %d, v%d" % (r, vT0))
        A("s_nop 1")
        A("v_cndmask_b32 v%d, 0, v%d, vcc" % (vMASK + r, vT1))
    for i in range(4):
        A("v_mov_b32 v%d, 0" % (vACC + i))
    A("v_lshlrev_b32 v%d, 4, v%d" % (vL16, vLANE))
    C("arrival ticket: one nibble per XCD, so the last arriver also learns whether all splits share its L2")
    A("s_getreg_b32 s%d, hwreg(HW_REG_XCC_ID, 0, 3)" % sFAST)
    A("s_lshl_b32 s%d, s%d, 2" % (sFAST, sFAST))
    A("s_lshl_b32 s%d, 1, s%d" % (sTMP, sFAST))
    A("s_lshl_b32 s%d, %d, s%d" % (sFAST, 15 if force else 7, sFAST))
    A("v_mov_b32 v%d, s%d" % (vTK, sTMP))
    A("v_mov_b32 v%d, v%d" % (vPOFF, vL16))
    A("s_lshl_b32 s%d, s%d, 15" % (sTMP, sP))
    for i in range(8):
        A("s_xor_b32 s%d, s%d, %d" % (sSLOT + i, sS, i))
        A("s_lshl_b32 s%d, s%d, 12" % (sSLOT + i, sSLOT + i))
        A("s_add_u32 s%d, s%d, s%d" % (sSLOT + i, sSLOT + i, sTMP))
    if rep >= 0:
        A("s_lshl_b32 s%d, s%d, 2" % (sDB, sP))
        A("s_add_u32 s%d, s%d, 128" % (sDB, sDB))
    else:
        A("s_lshl_b32 s%d, s%d, 3" % (sDB, sP))
    A("s_lshl_b32 s%d, s%d, 7" % (sEPO, sP))
    A("s_add_u32 s%d, s%d, 0x%x" % (sEPO, sEPO, NWG * 4096))
    A("s_waitcnt lgkmcnt(0)")
    C("tree bias (raw score units): (1-mask)*(-1e9)/scale for tid<16 of split 0, else -inf")
    A("s_and_b32 s%d, s%d, 16" % (sTMP, sP))
    A("s_lshr_b32 s%d, s%d, s%d" % (sMASK, sMASK, sTMP))
    A("s_lshl_b32 s%d, s%d, 16" % (sMASK, sMASK))
    A("v_mov_b32 v%d, s%d" % (vBIAS, sMASK))
    A("v_sub_f32 v%d, 1.0, v%d" % (vBIAS, vBIAS))
    A("v_mul_f32 v%d, %s, v%d" % (vBIAS, f32hex(-1e9 * math.sqrt(128.0)), vBIAS))
    A("s_cmp_eq_u32 s%d, 0" % sS)
    A("s_cselect_b32 s%d, 16, 0" % sTMP)
    A("v_mov_b32 v%d, 0xff800000" % vT0)
    A("v_cmp_gt_u32 vcc, s%d, v0" % sTMP)
    A("s_nop 1")
    A("v_cndmask_b32 v%d, v%d, v%d, vcc" % (vBIAS, vT0, vBIAS))

    def dppsum(dst, d):
        A("v_mov_b32_dpp v%d, v%d quad_perm:[0,0,0,0] row_mask:0xf bank_mask:0xf" % (dst, d))
        A("v_add_f32_dpp v%d, v%d, v%d quad_perm:[1,1,1,1] row_mask:0xf bank_mask:0xf" % (dst, d + 1, dst))
        A("v_add_f32_dpp v%d, v%d, v%d quad_perm:[2,2,2,2] row_mask:0xf bank_mask:0xf" % (dst, d + 2, dst))
        A("v_add_f32_dpp v%d, v%d, v%d quad_perm:[3,3,3,3] row_mask:0xf bank_mask:0xf" % (dst, d + 3, dst))

    if only >= 0:
        A("s_and_b32 s%d, s2, 7" % sTMP)
        A("s_lshr_b32 s%d, 0x%x, s%d" % (sTMP, only, sTMP))
        A("s_bitcmp0_b32 s%d, 0" % sTMP)
        A("s_cbranch_scc1 L_dump")
    C("---- QK phase")
    pend = []
    done_s = []
    first_max = [True]
    def fold_max():
        while len(done_s) >= 2:
            a, b = done_s.pop(0), done_s.pop(0)
            if first_max[0]:
                A("v_max_f32 v%d, v%d, v%d" % (vM, a, b)); first_max[0] = False
            else:
                A("v_max3_f32 v%d, v%d, v%d, v%d" % (vM, vM, a, b))
    tree_pos = min(T - 1, R + 1)
    seq = []
    for i in range(T):
        seq.append(("k", i))
        if i == tree_pos: seq.append(("tree", T))
    for n, (kind, i) in enumerate(seq):
        d = vD[n % 4]
        if kind == "tree":
            A("v_mfma_f32_16x16x32_bf16 v[%d:%d], v[%d:%d], v[%d:%d], 0" % (d, d + 3, vKT, vKT + 3, vQ, vQ + 3))
            mpos = cnt[0]
        else:
            if i == 0 and qpos > 0: waitfor("q")
            else: waitfor(i)
            if i == 0 and st2 == 0: stamp(2)
            r = slot(i)
            A("v_mfma_f32_16x16x32_bf16 v[%d:%d], v[%d:%d], v[%d:%d], 0" % (d, d + 3, r, r + 3, vQ, vQ + 3))
            mpos = cnt[0]
            if i + R < 2 * T:
                issue(i + R)
            if i == dryat:
                C("one wave walks the gather/combine arithmetic with no lanes active (instruction fetch warm-up)")
                A("s_cmp_lg_u32 s%d, %d" % (sWV, drywave))
                A("s_cbranch_scc1 L_dry_back")
                A("s_mov_b64 exec, 0")
                A("s_mov_b64 vcc, 0")
                A("s_mov_b32 s%d, 1" % sIT)
                A("s_branch L_check")
                LBL("L_dry_back")
                A("s_mov_b64 exec, -1")
                A("s_nop 4")
        pend.append((SREG + i, d, mpos))
        if len(pend) > 2:
            dst, dd, pos = pend.pop(0)
            pad_since(pos, 8)
            dppsum(dst, dd)
            if dst == SREG + T:
                A("v_add_f32 v%d, v%d, v%d" % (dst, dst, vBIAS))
            done_s.append(dst)
            fold_max()
    assert issued.index("vt") < issued.index(tree_pos)
    for dst, dd, pos in pend:
        pad_since(pos, 8)
        dppsum(dst, dd)
        assert dst != SREG + T
        done_s.append(dst)
    fold_max()
    if done_s:
        A("v_max_f32 v%d, v%d, v%d" % (vM, vM, done_s.pop()))
    C("---- max")
    stamp(3)
    def xrow(op, v):
        A("v_mov_b32 v%d, v%d" % (vT0, v))
        A("s_nop 1")
        A("v_permlane16_swap_b32 v%d, v%d" % (v, vT0))
        A("s_nop 1")
        A("%s v%d, v%d, v%d" % (op, v, v, vT0))
        A("v_mov_b32 v%d, v%d" % (vT0, v))
        A("s_nop 1")
        A("v_permlane32_swap_b32 v%d, v%d" % (v, vT0))
        A("s_nop 1")
        A("%s v%d, v%d, v%d" % (op, v, v, vT0))
    xrow("v_max_f32", vM)
    A("ds_write_b32 v%d, v%d offset:%d" % (vLDSA, vM, OFF_M))
    A("v_bfe_u32 v%d, v0, 3, 1" % vT1)
    A("v_lshlrev_b32 v%d, %d, v%d" % (vT1, int(math.log2(NW * 4)), vT1))
    A("s_waitcnt lgkmcnt(0)")
    A("s_barrier")
    nq = NW // 4
    for q in range(nq):
        A("ds_read_b128 v[%d:%d], v%d offset:%d" % (vD[q], vD[q] + 3, vT1, OFF_M + 16 * q))
    A("s_waitcnt lgkmcnt(0)")
    regs = [vD[q] + i for q in range(nq) for i in range(4)]
    for k in range(0, len(regs), 2):
        A("v_max3_f32 v%d, v%d, v%d, v%d" % (vM, vM, regs[k], regs[k + 1]))
    A("v_mul_f32 v%d, s%d, v%d" % (vM, sC, vM))
    A("v_sub_f32 v%d, 0, v%d" % (vNMC, vM))
    C("---- exp (software-pipelined into the PV loop)")
    def expo(i):
        A("v_fma_f32 v%d, v%d, s%d, v%d" % (SREG + i, SREG + i, sC, vNMC))
        A("v_exp_f32 v%d, v%d" % (SREG + i, SREG + i))
    lfirst = [True]
    def fin(i):
        if lfirst[0]:
            A("v_mov_b32 v%d, v%d" % (vL, SREG + i)); lfirst[0] = False
        else:
            A("v_add_f32 v%d, v%d, v%d" % (vL, vL, SREG + i))
        A("v_cvt_pk_bf16_f32 v%d, v%d, v%d" % (SREG + i, SREG + i, SREG + i))
    def expand(i, n):
        p = vD[n % 4]
        for r in range(4):
            A("v_and_b32 v%d, v%d, v%d" % (p + r, SREG + i, vMASK + r))
    seq = [("tree", T)] + [("v", i) for i in range(T)]
    NS = len(seq)
    e_next = [0]; f_next = [0]
    def run_exp(k):
        for _ in range(k):
            if e_next[0] < NS:
                expo(seq[e_next[0]][1]); e_next[0] += 1
    def run_fin(upto):
        while f_next[0] < min(upto, NS):
            fin(seq[f_next[0]][1]); f_next[0] += 1
    run_exp(4)
    run_fin(3)
    expand(seq[0][1], 0)
    expand(seq[1][1], 1)
    l_done = [False]
    vOA = vKT
    SETB = RING
    assert 56 <= 4 * R
    def polls(SET):
        for i in range(1, 8):
            for g in range(2):
                r = SET + 8 * (i - 1) + 4 * g
                A("buffer_load_dwordx4 v[%d:%d], v%d, s[%d:%d], s%d offen%s %s" % (r, r + 3, vPOFF, sWS, sWS + 3, sSLOT + i, " offset:1024" if g else "", pld))
    mp = [0]
    def pvstep(n):
        kind, i = seq[n]
        p = vD[n % 4]
        if kind == "tree":
            r = vVT
        else:
            waitfor(T + i)
            r = slot(T + i)
        A("v_mfma_f32_16x16x32_bf16 v[%d:%d], v[%d:%d], v[%d:%d], v[%d:%d]" % (vACC, vACC + 3, p, p + 3, r, r + 3, vACC, vACC + 3))
        mp[0] = cnt[0]
        if kind != "tree" and T + i + R < 2 * T:
            issue(T + i + R)
        if n == epat:
            C("wave 0: hand-off generation word of this pair (tells this launch's records from older ones)")
            A("s_cmp_lg_u32 s%d, 0" % sWV)
            A("s_cbranch_scc1 L_skip_ep")
            A("buffer_load_dword v%d, off, s[%d:%d], s%d sc1" % (vEP, sWS, sWS + 3, sEPO))
            if warm.startswith("ld"):
                fl = warm[2:].strip()
                A("buffer_load_dwordx4 v[%d:%d], v%d, s[%d:%d], s%d offen %s" % (vKT, vKT + 3, vL16, sWS, sWS + 3, sSLOT, fl))
                A("buffer_load_dwordx4 v[%d:%d], v%d, s[%d:%d], s%d offen offset:1024 %s" % (vKT, vKT + 3, vL16, sWS, sWS + 3, sSLOT, fl))
            if bwarm:
                A("buffer_load_dwordx4 v[%d:%d], v%d, s[%d:%d], s%d offen offset:2048" % (vKT, vKT + 3, vL16, sWS, sWS + 3, sSLOT))
                A("buffer_load_dwordx4 v[%d:%d], v%d, s[%d:%d], s%d offen offset:3072" % (vKT, vKT + 3, vL16, sWS, sWS + 3, sSLOT))
            if warm.startswith("st"):
                fl = warm[2:].strip()
                A("buffer_store_dwordx4 v[%d:%d], v%d, s[%d:%d], s%d offen %s" % (vMASK, vMASK + 3, vL16, sWS, sWS + 3, sSLOT, fl))
                A("buffer_store_dwordx4 v[%d:%d], v%d, s[%d:%d], s%d offen offset:1024 %s" % (vMASK, vMASK + 3, vL16, sWS, sWS + 3, sSLOT, fl))
            LBL("L_skip_ep")
            assert n + R + 2 < NS - KT
        had = e_next[0]
        run_exp(2)
        run_fin(had if e_next[0] > had else NS)
        if had == e_next[0] and f_next[0] == NS and not l_done[0]:
            l_done[0] = True
            xrow("v_add_f32", vL)
            A("ds_write_b32 v%d, v%d offset:%d" % (vLDSA, vL, OFF_L))
            C("epilogue addresses")
            A("v_lshlrev_b32 v%d, 4, v0" % vT0)
            A("v_lshrrev_b32 v%d, 5, v%d" % (vT2, vLANE))
            A("v_lshlrev_b32 v%d, 8, v%d" % (vOA, vT2))
            A("v_lshlrev_b32 v%d, %d, v%d" % (vT2, int(math.log2(NW * 4)), vT2))
            C("M for head h' = lane/32 (scaled): lanes 0 / 8 hold heads 0 / 1")
            A("v_readlane_b32 s%d, v%d, 0" % (sTMP, vM))
            A("v_readlane_b32 s%d, v%d, 8" % (sTMP2, vM))
            A("v_cmp_gt_u32 vcc, 32, v%d" % vLANE)
            A("v_mov_b32 v%d, s%d" % (vT1, sTMP))
            A("v_mov_b32 v%d, s%d" % (vG + 6, sTMP2))
            A("v_cndmask_b32 v%d, v%d, v%d, vcc" % (vG + 2, vG + 6, vT1))
            C("out byte offset: p*512 + h'*256 + (l%16)*16 + ((l>>4)&1)*8")
            A("v_and_b32 v%d, 15, v%d" % (vT1, vLANE))
            A("v_lshl_add_u32 v%d, v%d, 4, v%d" % (vOA, vT1, vOA))
            A("v_bfe_u32 v%d, v%d, 4, 1" % (vT1, vLANE))
            A("v_lshl_add_u32 v%d, v%d, 3, v%d" % (vOA, vT1, vOA))
            A("s_lshl_b32 s%d, s%d, 9" % (sTMP2, sP))
        if n + 2 < NS:
            assert f_next[0] > n + 2
            expand(seq[n + 2][1], n + 2)
    for n in range(NS):
        if n == NS - KT:
            assert l_done[0]
            C("wave 0: arrival ticket of this split")
            A("s_cmp_lg_u32 s%d, 0" % sWV)
            A("s_cbranch_scc1 L_skip_tk")
            A("v_readfirstlane_b32 s%d, v%d" % (sTAG, vEP))
            A("s_mov_b64 exec, 1")
            A("buffer_atomic_add v%d, off, s[%d:%d], s%d sc0 sc1" % (vTK, sDBG, sDBG + 3, sDB))
            A("s_mov_b64 exec, -1")
            A("s_mul_i32 s%d, s%d, 0x9e3779b1" % (sTAG, sTAG))
            A("s_add_u32 s%d, s%d, 0x7f4a7c15" % (sTAG, sTAG))
            A("s_movk_i32 s%d, 0x7fff" % sIT)
            A("v_mov_b32 v%d, s%d" % (vG + 3, sTAG))
            A("v_mov_b32 v%d, s%d" % (vG + 7, sTAG))
            LBL("L_skip_tk")
        pvstep(n)
    ENDL = "L_dump" if stamps else "L_end"
    stamp(4)
    A("s_cmp_eq_u32 s%d, 0" % sWV)
    A("s_cbranch_scc1 L_w0")
    C("---- waves 1..3: hand the sums to wave 0")
    pad_since(mp[0], 8)
    A("ds_write_b128 v%d, v[%d:%d] offset:%d" % (vT0, vACC, vACC + 3, OFF_O))
    A("s_waitcnt lgkmcnt(0)")
    A("s_barrier")
    if dryend:
        A("s_mov_b64 exec, 0")
        A("s_mov_b64 vcc, 0")
        A("s_mov_b32 s%d, 0" % sIT)
        A("s_branch L_check")
    elif stamps: A("s_branch L_dump")
    else: A("s_endpgm")
    LBL("L_w0")
    def reduce_own():
        B0 = 4
        for w in range(1, NW):
            A("ds_read_b128 v[%d:%d], v%d offset:%d" % (B0 + 4 * w, B0 + 4 * w + 3, vL16, OFF_O + 1024 * w))
        BL = B0 + 4 * NW
        A("ds_read_b128 v[%d:%d], v%d offset:%d" % (BL, BL + 3, vT2, OFF_L))
        pad_since(mp[0], 8)
        for w in range(1, NW):
            A("s_waitcnt lgkmcnt(%d)" % ((NW - 1 - w) + 1))
            for hh in (0, 2):
                d = vACC + hh if w < NW - 1 else vG + 2 * hh
                A("v_pk_add_f32 v[%d:%d], v[%d:%d], v[%d:%d]" % (d, d + 1, vACC + hh, vACC + hh + 1, B0 + 4 * w + hh, B0 + 4 * w + hh + 1))
        return BL
    def lsum(BL):
        A("s_waitcnt lgkmcnt(0)")
        A("v_pk_add_f32 v[%d:%d], v[%d:%d], v[%d:%d]" % (BL, BL + 1, BL, BL + 1, BL + 2, BL + 3))
        A("v_add_f32 v%d, v%d, v%d" % (vG + 6, BL, BL + 1))
    def publish():
        BL = reduce_own()
        A("buffer_store_dwordx4 v[%d:%d], v%d, s[%d:%d], s%d offen %s" % (vG, vG + 3, vL16, sWS, sWS + 3, sSLOT, pst))
        lsum(BL)
        A("buffer_store_dwordx4 v[%d:%d], v%d, s[%d:%d], s%d offen offset:1024 %s" % (vG + 4, vG + 7, vL16, sWS, sWS + 3, sSLOT, pst))
    def check(SET, lbl):
        for i in range(7):
            A("v_bitop3_b32 v%d, v%d, v%d, s%d bitop3:0x7e" % (8 + i, SET + 8 * i + 3, SET + 8 * i + 7, sTAG))
        A("v_or3_b32 v8, v8, v9, v10")
        A("v_or3_b32 v11, v11, v12, v13")
        A("v_or3_b32 v8, v8, v11, v14")
        A("v_cmp_ne_u32 vcc, 0, v8")
        A("s_cbranch_vccnz L_repoll")
    def combine(SET):
        G = [vG] + [SET + 8 * i for i in range(7)]
        A("v_max3_f32 v8, v%d, v%d, v%d" % (G[0] + 2, G[1] + 2, G[2] + 2))
        A("v_max3_f32 v9, v%d, v%d, v%d" % (G[3] + 2, G[4] + 2, G[5] + 2))
        A("v_max3_f32 v8, v8, v%d, v%d" % (G[6] + 2, G[7] + 2))
        A("v_max_f32 v8, v8, v9")
        for s in range(8):
            A("v_sub_f32 v%d, v%d, v8" % (G[s] + 2, G[s] + 2))
            A("v_exp_f32 v%d, v%d" % (G[s] + 2, G[s] + 2))
        for s in range(8):
            A("v_mul_f32 v%d, v%d, v%d" % (G[s] + 6, G[s] + 2, G[s] + 6))
        for st in (1, 2, 4):
            for s in range(0, 8, 2 * st):
                A("v_add_f32 v%d, v%d, v%d" % (G[s] + 6, G[s] + 6, G[s + st] + 6))
        A("v_rcp_f32 v8, v%d" % (G[0] + 6))
        for s in range(8):
            for hh in (0, 4):
                A("v_pk_mul_f32 v[%d:%d], v[%d:%d], v[%d:%d] op_sel_hi:[1,0]" % (G[s] + hh, G[s] + hh + 1, G[s] + hh, G[s] + hh + 1, G[s] + 2, G[s] + 3))
        for st in (1, 2, 4):
            for s in range(0, 8, 2 * st):
                for hh in (0, 4):
                    A("v_pk_add_f32 v[%d:%d], v[%d:%d], v[%d:%d]" % (G[s] + hh, G[s] + hh + 1, G[s] + hh, G[s] + hh + 1, G[s + st] + hh, G[s + st] + hh + 1))
        A("s_branch L_fin")
    def bump():
        C("advance the generation word")
        A("s_mov_b64 exec, 1")
        A("buffer_store_dword v%d, off, s[%d:%d], s%d sc1" % (vG + 7, sWS, sWS + 3, sEPO))
    C("only the holder of the last ticket gathers; the others publish")
    A("v_readfirstlane_b32 s%d, v%d" % (sTMP, vTK))
    A("s_cmp_lg_u32 s%d, s%d" % (sTMP, sFAST))
    A("s_cbranch_scc1 L_nopoll")
    polls(SETB)
    if epw == "early":
        bump()
        A("s_mov_b64 exec, -1")
    LBL("L_nopoll")
    A("s_barrier")
    stamp(5)
    mp[0] = cnt[0] - 6
    BL = reduce_own()
    A("s_cbranch_scc0 L_last")
    C("copy A stays in this XCD's L2 (read only by a gatherer on the same XCD), copy B is written through")
    A("buffer_store_dwordx4 v[%d:%d], v%d, s[%d:%d], s%d offen" % (vG, vG + 3, vL16, sWS, sWS + 3, sSLOT))
    lsum(BL)
    A("buffer_store_dwordx4 v[%d:%d], v%d, s[%d:%d], s%d offen offset:1024" % (vG + 4, vG + 7, vL16, sWS, sWS + 3, sSLOT))
    A("buffer_store_dwordx4 v[%d:%d], v%d, s[%d:%d], s%d offen offset:2048 %s" % (vG, vG + 3, vL16, sWS, sWS + 3, sSLOT, pst))
    A("buffer_store_dwordx4 v[%d:%d], v%d, s[%d:%d], s%d offen offset:3072 %s" % (vG + 4, vG + 7, vL16, sWS, sWS + 3, sSLOT, pst))
    stamp(6)
    C("last ticket with the splits spread over several XCDs: gather the B copies")
    A("s_lshr_b32 s%d, s%d, 4" % (sFAST, sTMP))
    A("s_and_b32 s%d, s%d, 0xf0f0f0f" % (sFAST, sFAST))
    A("s_and_b32 s%d, s%d, 0xf0f0f0f" % (sTMP, sTMP))
    A("s_add_u32 s%d, s%d, s%d" % (sTMP, sTMP, sFAST))
    A("s_mul_i32 s%d, s%d, 0x1010101" % (sTMP, sTMP))
    A("s_lshr_b32 s%d, s%d, 24" % (sTMP, sTMP))
    A("s_cmp_eq_u32 s%d, %d" % (sTMP, NSPLIT - 1))
    A("s_cbranch_scc1 L_far")
    if stamps: A("s_branch L_dump")
    else: A("s_endpgm")
    LBL("L_last")
    lsum(BL)
    if epw == "early":
        A("s_waitcnt vmcnt(1)")
        LBL("L_wait")
    else:
        LBL("L_wait")
        A("s_waitcnt vmcnt(0)")
    stamp(6)
    LBL("L_check")
    check(SETB, None)
    LBL("L_comb")
    combine(SETB)
    L.pop()
    A("v_pk_mul_f32 v[%d:%d], v[%d:%d], v[8:9] op_sel_hi:[1,0]" % (vG, vG + 1, vG, vG + 1))
    A("v_pk_mul_f32 v[%d:%d], v[%d:%d], v[8:9] op_sel_hi:[1,0]" % (vG + 4, vG + 5, vG + 4, vG + 5))
    A("v_cvt_pk_bf16_f32 v16, v%d, v%d" % (vG, vG + 1))
    A("v_cvt_pk_bf16_f32 v17, v%d, v%d" % (vG + 4, vG + 5))
    if dryend or dryat >= 0:
        A("s_cbranch_execz L_dryexit")
    A("buffer_store_dwordx2 v[16:17], v%d, s[%d:%d], s%d offen%s" % (vOA, sOUT, sOUT + 3, sTMP2, (" " + ost) if ost else ""))
    if epw != "early": bump()
    if stamps:
        A("s_waitcnt vmcnt(0)")
        stamp(7)
        LBL("L_dump")
        A("s_waitcnt vmcnt(0) lgkmcnt(0)")
        A("s_mov_b64 exec, 1")
        if rep >= 0:
            def spin(lbl, sreg):
                LBL(lbl)
                A("s_sleep 4")
                A("s_memrealtime s[%d:%d]" % (sMP, sMP + 1))
                A("s_waitcnt lgkmcnt(0)")
                A("s_sub_u32 s%d, s%d, s%d" % (sTMP2, sMP, sST))
                A("s_cmp_lt_u32 s%d, s%d" % (sTMP2, sreg))
                A("s_cbranch_scc1 %s" % lbl)
            A("s_memrealtime s[%d:%d]" % (sST + 12, sST + 13))
            A("s_movk_i32 s%d, 4000" % sTMP)
            spin("L_sp1", sTMP)
            A("s_and_b32 s%d, s%d, 7" % (sIT, sST + 2))
            A("s_not_b32 s%d, s%d" % (sTMP, sST))
            A("s_not_b32 s%d, s%d" % (sTAG, sST + 8))
            vals = [(sTMP, "x0"), (sST + 8, "x8"), (sTMP, 16), (sST, 17), (sST + 8, 18), (sST + 12, 19), (sST + 6, 20), (sTAG, 21)]
            for ln, (sv, dw) in enumerate(vals):
                A("v_writelane_b32 v12, s%d, %d" % (sv, ln))
                if isinstance(dw, str):
                    A("s_add_u32 s%d, s%d, %d" % (sTMP2, sIT, int(dw[1:])))
                    A("s_lshl_b32 s%d, s%d, 2" % (sTMP2, sTMP2))
                else:
                    A("s_movk_i32 s%d, %d" % (sTMP2, 4 * dw))
                A("v_writelane_b32 v13, s%d, %d" % (sTMP2, ln))
            A("s_mov_b64 exec, 0x%x" % ((1 << len(vals)) - 1))
            A("s_nop 4")
            A("buffer_atomic_umax v12, v13, s[%d:%d], 0 offen sc1" % (sDBG, sDBG + 3))
            A("s_mov_b64 exec, 1")
            A("s_sub_u32 s%d, s%d, s%d" % (sTMP, sST + 8, sST))
            A("v_mov_b32 v14, s%d" % sTMP)
            A("buffer_atomic_add v14, off, s[%d:%d], 0 offset:88 sc1" % (sDBG, sDBG + 3))
            A("s_or_b32 s%d, s2, s%d" % (sTMP, sWV))
            A("s_cmp_lg_u32 s%d, 0" % sTMP)
            A("s_cbranch_scc1 L_end")
            A("s_movk_i32 s%d, 15000" % sTMP)
            spin("L_sp2", sTMP)
            A("buffer_load_dword v12, off, s[%d:%d], 0 offset:%d sc0 sc1" % (sDBG, sDBG + 3, 4 * rep))
            A("buffer_load_dword v13, off, s[%d:%d], 0 offset:%d sc0 sc1" % (sDBG, sDBG + 3, 4 * repb))
            A("s_waitcnt vmcnt(0)")
            A("v_readfirstlane_b32 s%d, v12" % sTMP)
            A("v_readfirstlane_b32 s%d, v13" % sTMP2)
            if rep == 22:
                A("s_lshr_b32 s%d, s%d, 10" % (sTMP, sTMP))
            elif rep in (0, 1, 2, 3, 4, 5, 6, 7, 16, 21):
                A("s_sub_u32 s%d, s%d, s%d" % (sTMP, sTMP2, sTMP))
            else:
                A("s_add_u32 s%d, s%d, s%d" % (sTMP, sTMP, sTMP2))
                A("s_add_u32 s%d, s%d, 1" % (sTMP, sTMP))
            A("s_min_u32 s%d, s%d, 5000" % (sTMP, sTMP))
            A("s_mul_i32 s%d, s%d, %d" % (sTMP, sTMP, ampk))
            A("s_add_u32 s%d, s%d, 16000" % (sTMP, sTMP))
            spin("L_sp3", sTMP)
            A("s_endpgm")
        if amp >= 0:
            if amp == 8:
                A("s_memrealtime s[%d:%d]" % (sST + 2, sST + 3))
                A("s_waitcnt lgkmcnt(0)")
            k = 1 if amp == 8 else amp
            A("s_cmp_eq_u32 s%d, 0" % (sST + 2 * k))
            A("s_cbranch_scc1 L_end")
            A("s_sub_u32 s%d, s%d, s%d" % (sTMP, sST + 2 * k, sST))
            A("s_min_u32 s%d, s%d, 5000" % (sTMP, sTMP))
            A("s_mul_i32 s%d, s%d, %d" % (sTMP, sTMP, ampk))
            LBL("L_spin")
            A("s_sleep 2")
            A("s_memrealtime s[%d:%d]" % (sST + 2, sST + 3))
            A("s_waitcnt lgkmcnt(0)")
            A("s_sub_u32 s%d, s%d, s%d" % (sTMP2, sST + 2, sST))
            A("s_cmp_lt_u32 s%d, s%d" % (sTMP2, sTMP))
            A("s_cbranch_scc1 L_spin")
            A("s_endpgm")
        if hst:
            for dw, k, neg in ((1, 0, 1), (3, 0, 0), (5, 2, 1), (7, 2, 0), (9, 3, 0), (11, 4, 1), (13, 4, 0), (15, 7, 0)):
                if neg:
                    A("s_not_b32 s%d, s%d" % (sTMP, sST + 2 * k))
                    A("v_mov_b32 v12, s%d" % sTMP)
                else:
                    A("v_mov_b32 v12, s%d" % (sST + 2 * k))
                A("buffer_atomic_umax v12, off, s[%d:%d], 0 offset:%d sc1" % (sDBG, sDBG + 3, 4 * dw))
                A("s_nop 2")
            A("s_endpgm")
        A("s_mov_b32 s%d, 0x10000000" % (sWS + 2))
        A("s_lshl_b32 s%d, s2, %d" % (sTMP, int(math.log2(NW)) + 6))
        A("s_lshl_b32 s%d, s%d, 6" % (sTMP2, sWV))
        A("s_add_u32 s%d, s%d, s%d" % (sTMP, sTMP, sTMP2))
        A("s_add_u32 s%d, s%d, 0x1000000" % (sTMP, sTMP))
        A("v_mov_b32 v11, 0")
        for k in range(4):
            for i in range(4):
                A("v_mov_b32 v%d, s%d" % (12 + i, sST + 4 * k + i))
            A("buffer_store_dwordx4 v[12:15], v11, s[%d:%d], s%d offen offset:%d" % (sWS, sWS + 3, sTMP, 16 * k))
            A("s_nop 2")
    LBL("L_end")
    A("s_endpgm")
    LBL("L_far")
    A("v_add_u32 v%d, 2048, v%d" % (vPOFF, vPOFF))
    if epw == "early":
        bump()
        A("s_mov_b64 exec, -1")
    LBL("L_repoll")
    polls(SETB)
    A("s_sub_u32 s%d, s%d, 1" % (sIT, sIT))
    A("s_cmp_lg_u32 s%d, 0" % sIT)
    if epw == "early":
        A("s_waitcnt vmcnt(0)")
        A("s_cbranch_scc1 L_wait")
    else:
        A("s_cbranch_scc1 L_wait")
        A("s_waitcnt vmcnt(0)")
    A("s_branch L_comb")
    if dryend or dryat >= 0:
        LBL("L_dryexit")
        if dryat >= 0:
            A("s_cmp_eq_u32 s%d, 1" % sIT)
            A("s_cbranch_scc1 L_dry_back")
        if stamps: A("s_branch L_dump")
        else: A("s_endpgm")

    out = HEADER
    out += "; @launch grid=(%d,1,1) block=(%d,1,1) lds=%d\n" % (NWG, NW * 64, LDS)
    out += '.amdgcn_target "amdgcn-amd-amdhsa--gfx950"\n.text\n'
    if al: out += ".p2align %d\n" % al
    out += ".globl %s_kernel\n.p2align 8\n.type %s_kernel,@function\n%s_kernel:\n" % (NAME, NAME, NAME)
    out += "\n".join(L) + "\n"
    out += '.section .rodata,"a"\n.p2align 6\n.amdhsa_kernel %s_kernel\n' % NAME
    out += "  .amdhsa_next_free_vgpr %d\n  .amdhsa_next_free_sgpr %d\n  .amdhsa_accum_offset %d\n" % (total_v, 96 if stamps else 64, total_v)
    out += "  .amdhsa_group_segment_fixed_size 0\n  .amdhsa_kernarg_size 72\n  .amdhsa_user_sgpr_count 2\n"
    out += "  .amdhsa_user_sgpr_kernarg_segment_ptr 1\n  .amdhsa_system_sgpr_workgroup_id_x 1\n"
    out += "  .amdhsa_float_denorm_mode_32 3\n"
    out += ".end_amdhsa_kernel\n"
    return out

if __name__ == "__main__":
    names = []
    for spec in sys.argv[1:]:
        kw = {}
        main = False
        for kv in spec.split(","):
            if kv == "MAIN": main = True; continue
            k, v = kv.split("=")
            kw[k] = int(v) if v.lstrip("-").isdigit() else v.replace("+", " ")
        n = "var/g6_" + spec.replace(",", "_").replace("=", "").replace("+", "") + ".s"
        if main: n = "cdna_kernels/%s.s" % NAME
        open("code/" + n, "w").write(gen(**kw))
        names.append(n)
    print(" ".join(names))
    print(str(["bench/bench.py", "bench/flush.s", "bench/icev.s", "cdna_kernels/cdna_launch.py", "cdna_kernels/cdna_unwritten_srd_check.py"] + names).replace("'", '"'))
    print(str(names).replace("'", '"'))
```

```python
import sys, math, struct

NAME = "standalone__tree_speculative_verify_tree_attention_over_candidate_token_tree__decode"

HEADER = """; Kernarg layout for this problem (72 bytes, ptrs only, base s[0:1]):
;   offset  24: d_in[3] k_tree  shape=(2, 16, 1, 128) dtype=bfloat16 strides=(4096, 256, 256, 2) contiguous=True
;   offset  32: d_in[4] v_tree  shape=(2, 16, 1, 128) dtype=bfloat16 strides=(4096, 256, 256, 2) contiguous=True
;   offset  40: d_in[5] tree_mask  shape=(2, 1, 1) dtype=bfloat16 strides=(2, 2, 2) contiguous=True
"""

def f32hex(x):
    return "0x%08x" % struct.unpack("<I", struct.pack("<f", x))[0]

def gen(R=24, cflag="nt", wgmap="xm", stamps=0, KT=8, ost="", kep=30, EX=4, nr=36, force=0, al=13, cp=0,
        ampk=10, rep=-1, repb=16, st5=0, bump="", R0=0):
    NW = 4; U = 1
    NSPLIT = 8
    NWG = 32 * NSPLIT
    T = 8192 // NSPLIT // NW // 4
    L = []
    cnt = [0]
    def A(s):
        L.append("    " + s)
        m = s.split()
        cnt[0] += (int(m[1]) + 1) if m[0] == "s_nop" else 1
    def pad_since(pos, need):
        have = cnt[0] - pos
        if have < need:
            A("s_nop %d" % (need - have - 1))
    def C(s): L.append("    ; " + s)
    def LBL(s): L.append(s + ":")

    vKOFF, vVOFF = 1, 2
    vT0, vT1, vT2 = 3, 36, 37
    vQ = 4
    vD = [8, 12, 16, 20]
    vKT, vVT = 24, 28
    vMASK = 32
    vBIAS, vL, vACC, vLANE, vLDSA, vM, vNMC = 38, 39, 40, 44, 45, 46, 47
    vG, vL16, vTK, vEP, vPOFF = 48, 56, 57, 38, 58
    SREG = 59
    RING = (SREG + T + 1 + 3) // 4 * 4
    total_v = (RING + 4 * R + 7) // 8 * 8
    assert total_v <= 256
    vREC = vQ
    vW, vOWN, vX = 60, 68, 72
    vRA = 25

    OFF_M, OFF_L, OFF_O = 0, 128, 256
    LDS = OFF_O + NW * 1024
    cscale = (128 ** -0.5) * math.log2(math.e)
    RECBASE = NWG * 4096
    WSBYTES = RECBASE + 32 * 512

    sK, sV, sQ, sKT, sVT, sOUT, sDBG, sWS = 4, 8, 12, 16, 20, 24, 28, 32
    sMP = 36
    sXCC, sTHR = 38, 39
    sP, sS, sWV, sMASK, sC, sTMP, sTMP2, sKO, sVO = 40, 41, 42, 43, 44, 45, 46, 47, 48
    sSLOT = 50
    sDB, sTAG, sIT, sREC, sFAST = 58, 59, 60, 61, 62
    sST = 64
    def stamp(k):
        if stamps:
            A("s_memrealtime s[%d:%d]" % (sST + 2 * k, sST + 2 * k + 1))
    ENDL = "L_dump" if stamps else "L_end"
    def finish():
        if stamps: A("s_branch L_dump")
        else: A("s_endpgm")

    if stamps:
        for k in range(16):
            A("s_mov_b32 s%d, 0" % (sST + k))
        stamp(0)
    A("s_load_dwordx2 s[%d:%d], s[0:1], 8" % (sK, sK + 1))
    A("s_load_dwordx2 s[%d:%d], s[0:1], 0" % (sQ, sQ + 1))
    A("s_load_dwordx2 s[%d:%d], s[0:1], 16" % (sV, sV + 1))
    A("s_load_dwordx2 s[%d:%d], s[0:1], 24" % (sKT, sKT + 1))
    A("s_load_dwordx2 s[%d:%d], s[0:1], 32" % (sVT, sVT + 1))
    A("s_load_dwordx2 s[%d:%d], s[0:1], 40" % (sMP, sMP + 1))
    A("s_cmp_ge_u32 s2, %d" % NWG)
    A("s_cbranch_scc1 L_end")
    if wgmap == "pm":
        A("s_lshr_b32 s%d, s2, 3" % sP)
        A("s_and_b32 s%d, s2, 7" % sS)
        A("s_lshl_b32 s%d, s2, 18" % sKO)
    else:
        C("chunk c = (g&7)*32 + (g>>3) = pair*8 + split: the splits of a pair have equal g%8")
        A("s_and_b32 s%d, s2, 7" % sTMP)
        A("s_lshl_b32 s%d, s%d, 5" % (sTMP, sTMP))
        A("s_lshr_b32 s%d, s2, 3" % sS)
        A("s_or_b32 s%d, s%d, s%d" % (sTMP, sTMP, sS))
        A("s_lshl_b32 s%d, s%d, 18" % (sKO, sTMP))
        A("s_lshr_b32 s%d, s%d, 3" % (sP, sTMP))
        A("s_and_b32 s%d, s%d, 7" % (sS, sS))
    C("K lane offset: w*1024 + ((l%16)/4)*256 + (l%4)*16 + (l/16)*64")
    A("v_and_b32 v%d, 3, v0" % vT2)
    A("v_bfe_u32 v%d, v0, 4, 2" % vT1)
    A("v_lshlrev_b32 v%d, 6, v%d" % (vT1, vT1))
    A("v_lshl_add_u32 v%d, v%d, 4, v%d" % (vT2, vT2, vT1))
    A("v_bfe_u32 v%d, v0, 2, 2" % vT1)
    A("v_lshl_add_u32 v%d, v%d, 8, v%d" % (vKOFF, vT1, vT2))
    A("v_lshrrev_b32 v%d, 6, v0" % vT0)
    A("v_lshl_add_u32 v%d, v%d, 10, v%d" % (vKOFF, vT0, vKOFF))
    C("Q lane offset: h*256 + chunk, h = (l>>3)&1 ; soffset p*512")
    A("v_bfe_u32 v%d, v0, 3, 1" % vT1)
    A("v_lshl_add_u32 v%d, v%d, 8, v%d" % (vT1, vT1, vT2))
    A("s_lshl_b32 s%d, s%d, 9" % (sTMP, sP))
    A("s_mov_b32 s%d, 0x4000000" % (sK + 2))
    A("s_mov_b32 s%d, 0x20000" % (sK + 3))
    A("s_movk_i32 s%d, 0x4000" % (sQ + 2))
    A("s_mov_b32 s%d, 0x20000" % (sQ + 3))
    A("s_mov_b32 s%d, s%d" % (sVO, sKO))
    A("s_waitcnt lgkmcnt(0)")

    issued = []
    def waitfor(tag):
        idx = issued.index(tag)
        n = len(issued) - 1 - idx
        assert n <= 63
        A("s_waitcnt vmcnt(%d)" % n)
    A("buffer_load_dwordx4 v[%d:%d], v%d, s[%d:%d], s%d offen" % (vQ, vQ + 3, vT1, sQ, sQ + 3, sTMP))
    issued.append("q")

    def slot(j): return RING + 4 * (j % R)
    cur = {0: 0, 1: 0}
    def issue(j):
        isK = j < T
        i = j if isK else j - T
        b = i * NW * 1024
        so = sKO if isK else sVO
        k = 0 if isK else 1
        if b - cur[k] >= 4096:
            adv = (b - cur[k]) // 4096 * 4096
            A("s_add_u32 s%d, s%d, 0x%x" % (so, so, adv))
            cur[k] += adv
        imm = b - cur[k]
        r = slot(j)
        cf = cflag.split(",")[0 if isK else -1]
        A("buffer_load_dwordx4 v[%d:%d], v%d, s[%d:%d], s%d offen%s%s" % (
            r, r + 3, vKOFF if isK else vVOFF, sK if isK else sV, (sK if isK else sV) + 3, so,
            (" offset:%d" % imm) if imm else "", (" " + cf) if cf else ""))
        issued.append(j)

    for j in range(R):
        issue(j)

    C("remaining setup while loads fly")
    A("s_load_dword s%d, s[%d:%d], 0" % (sMASK, sMP, sMP + 1))
    A("s_load_dwordx2 s[%d:%d], s[0:1], 48" % (sOUT, sOUT + 1))
    A("s_load_dwordx2 s[%d:%d], s[0:1], 56" % (sDBG, sDBG + 1))
    A("s_load_dwordx2 s[%d:%d], s[0:1], 64" % (sWS, sWS + 1))
    for s, n in ((sV, 0x4000000), (sKT, 8192), (sVT, 8192), (sOUT, 16384), (sDBG, 256), (sWS, WSBYTES)):
        A("s_mov_b32 s%d, 0x%x" % (s + 2, n))
        A("s_mov_b32 s%d, 0x20000" % (s + 3))
    if stamps:
        A("s_getreg_b32 s%d, hwreg(HW_REG_XCC_ID)" % (sST + 2))
        A("s_getreg_b32 s%d, hwreg(HW_REG_HW_ID)" % (sST + 3))
    A("v_and_b32 v%d, 63, v0" % vLANE)
    A("v_lshlrev_b32 v%d, 4, v0" % vVOFF)
    A("v_readfirstlane_b32 s%d, v%d" % (sWV, vT0))
    C("tree tiles")
    A("s_lshl_b32 s%d, s%d, 8" % (sTMP2, sP))
    A("v_and_b32 v%d, 15, v0" % vT1)
    A("v_lshlrev_b32 v%d, 4, v%d" % (vT1, vT1))
    A("buffer_load_dwordx4 v[%d:%d], v%d, s[%d:%d], s%d offen" % (vKT, vKT + 3, vT2, sKT, sKT + 3, sTMP2))
    issued.append("kt")
    A("buffer_load_dwordx4 v[%d:%d], v%d, s[%d:%d], s%d offen" % (vVT, vVT + 3, vT1, sVT, sVT + 3, sTMP2))
    issued.append("vt")
    A("s_mov_b32 s%d, %s" % (sC, f32hex(cscale)))
    C("LDS address for stats: h*NW*4 + w*4 (h=(l>>3)&1)")
    A("v_bfe_u32 v%d, v0, 3, 1" % vT1)
    A("v_lshlrev_b32 v%d, %d, v%d" % (vT1, int(math.log2(NW * 4)), vT1))
    A("v_lshl_add_u32 v%d, v%d, 2, v%d" % (vLDSA, vT0, vT1))
    C("AND masks: reg r: (l%8)==2r -> 0xffff ; (l%8)==2r+1 -> 0xffff0000 ; else 0")
    A("v_and_b32 v%d, 1, v0" % vT0)
    A("v_lshlrev_b32 v%d, 4, v%d" % (vT0, vT0))
    A("v_mov_b32 v%d, 0xffff" % vT1)
    A("v_lshlrev_b32 v%d, v%d, v%d" % (vT1, vT0, vT1))
    A("v_bfe_u32 v%d, v0, 1, 2" % vT0)
    for r in range(4):
        A("v_cmp_eq_u32 vcc, %d, v%d" % (r, vT0))
        A("s_nop 1")
        A("v_cndmask_b32 v%d, 0, v%d, vcc" % (vMASK + r, vT1))
    for i in range(4):
        A("v_mov_b32 v%d, 0" % (vACC + i))
    A("v_lshlrev_b32 v%d, 4, v%d" % (vL16, vLANE))
    C("arrival ticket: one nibble per XCD, so the last arriver also learns whether all splits share its L2")
    A("s_getreg_b32 s%d, hwreg(HW_REG_XCC_ID, 0, 3)" % sXCC)
    A("s_lshl_b32 s%d, s%d, 2" % (sFAST, sXCC))
    A("s_lshl_b32 s%d, 1, s%d" % (sTMP, sFAST))
    A("s_lshl_b32 s%d, %d, s%d" % (sFAST, 15 if force == 1 else 7, sFAST))
    A("v_mov_b32 v%d, s%d" % (vTK, sTMP))
    A("v_mov_b32 v%d, v%d" % (vPOFF, vL16))
    A("s_lshl_b32 s%d, s%d, 15" % (sTMP, sP))
    for i in range(8):
        A("s_xor_b32 s%d, s%d, %d" % (sSLOT + i, sS, i))
        A("s_lshl_b32 s%d, s%d, 12" % (sSLOT + i, sSLOT + i))
        A("s_add_u32 s%d, s%d, s%d" % (sSLOT + i, sSLOT + i, sTMP))
    if rep >= 0:
        A("s_lshl_b32 s%d, s%d, 2" % (sDB, sP))
        A("s_add_u32 s%d, s%d, 128" % (sDB, sDB))
    else:
        A("s_lshl_b32 s%d, s%d, 3" % (sDB, sP))
    A("s_lshl_b32 s%d, s%d, 9" % (sREC, sP))
    A("s_add_u32 s%d, s%d, 0x%x" % (sREC, sREC, RECBASE))
    A("s_movk_i32 s%d, 0x7fff" % sIT)
    A("s_waitcnt lgkmcnt(0)")
    C("tree bias (raw score units): (1-mask)*(-1e9)/scale for tid<16 of split 0, else -inf")
    A("s_and_b32 s%d, s%d, 16" % (sTMP, sP))
    A("s_lshr_b32 s%d, s%d, s%d" % (sMASK, sMASK, sTMP))
    A("s_lshl_b32 s%d, s%d, 16" % (sMASK, sMASK))
    A("v_mov_b32 v%d, s%d" % (vBIAS, sMASK))
    A("v_sub_f32 v%d, 1.0, v%d" % (vBIAS, vBIAS))
    A("v_mul_f32 v%d, %s, v%d" % (vBIAS, f32hex(-1e9 * math.sqrt(128.0)), vBIAS))
    A("s_cmp_eq_u32 s%d, 0" % sS)
    A("s_cselect_b32 s%d, 16, 0" % sTMP)
    A("v_mov_b32 v%d, 0xff800000" % vT0)
    A("v_cmp_gt_u32 vcc, s%d, v0" % sTMP)
    A("s_nop 1")
    A("v_cndmask_b32 v%d, v%d, v%d, vcc" % (vBIAS, vT0, vBIAS))

    DPPF = "row_mask:0xf bank_mask:0xf"
    def dppsum(dst, d):
        A("v_mov_b32_dpp v%d, v%d quad_perm:[0,0,0,0] %s" % (dst, d, DPPF))
        A("v_add_f32_dpp v%d, v%d, v%d quad_perm:[1,1,1,1] %s" % (dst, d + 1, dst, DPPF))
        A("v_add_f32_dpp v%d, v%d, v%d quad_perm:[2,2,2,2] %s" % (dst, d + 2, dst, DPPF))
        A("v_add_f32_dpp v%d, v%d, v%d quad_perm:[3,3,3,3] %s" % (dst, d + 3, dst, DPPF))
    def w0_begin(lbl):
        A("s_cmp_lg_u32 s%d, 0" % sWV)
        A("s_cbranch_scc1 %s" % lbl)

    C("---- QK phase")
    pend = []
    done_s = []
    first_max = [True]
    def fold_max():
        while len(done_s) >= 2:
            a, b = done_s.pop(0), done_s.pop(0)
            if first_max[0]:
                A("v_max_f32 v%d, v%d, v%d" % (vM, a, b)); first_max[0] = False
            else:
                A("v_max3_f32 v%d, v%d, v%d, v%d" % (vM, vM, a, b))
    tree_pos = min(T - 1, R + 1)
    assert kep > tree_pos + 3 and kep + R + 1 < T + 8
    seq = []
    for i in range(T):
        seq.append(("k", i))
        if i == tree_pos: seq.append(("tree", T))
    for n, (kind, i) in enumerate(seq):
        d = vD[n % 4]
        if kind == "tree":
            A("v_mfma_f32_16x16x32_bf16 v[%d:%d], v[%d:%d], v[%d:%d], 0" % (d, d + 3, vKT, vKT + 3, vQ, vQ + 3))
            mpos = cnt[0]
        else:
            waitfor(i)
            if i == 0: stamp(2)
            r = slot(i)
            A("v_mfma_f32_16x16x32_bf16 v[%d:%d], v[%d:%d], v[%d:%d], 0" % (d, d + 3, r, r + 3, vQ, vQ + 3))
            mpos = cnt[0]
            if i + R < 2 * T:
                issue(i + R)
            if i == kep:
                C("wave 0: generation word of this pair (tells this launch's records from older ones);")
                C("        bring the pair's record lines and the own slot lines into L2 (values unused)")
                c0 = cnt[0]
                w0_begin("L_skip_ep")
                A("v_lshlrev_b32 v%d, 2, v%d" % (vG + 4, vLANE))
                A("buffer_load_dword v%d, off, s[%d:%d], s%d offset:256 sc1" % (vEP, sWS, sWS + 3, sREC))
                A("buffer_load_dword v%d, v%d, s[%d:%d], s%d offen sc1" % (vG + 5, vG + 4, sWS, sWS + 3, sREC))
                A("buffer_load_dwordx4 v[%d:%d], v%d, s[%d:%d], s%d offen" % (vG, vG + 3, vL16, sWS, sWS + 3, sSLOT))
                A("buffer_load_dwordx4 v[%d:%d], v%d, s[%d:%d], s%d offen offset:1024" % (vG, vG + 3, vL16, sWS, sWS + 3, sSLOT))
                LBL("L_skip_ep")
                cnt[0] = c0 + 2
        pend.append((SREG + i, d, mpos))
        if len(pend) > 2:
            dst, dd, pos = pend.pop(0)
            pad_since(pos, 8)
            dppsum(dst, dd)
            if dst == SREG + T:
                A("v_add_f32 v%d, v%d, v%d" % (dst, dst, vBIAS))
            done_s.append(dst)
            fold_max()
    assert issued.index("vt") < issued.index(tree_pos)
    for dst, dd, pos in pend:
        pad_since(pos, 8)
        dppsum(dst, dd)
        assert dst != SREG + T
        done_s.append(dst)
    fold_max()
    if done_s:
        A("v_max_f32 v%d, v%d, v%d" % (vM, vM, done_s.pop()))
    C("---- max")
    stamp(3)
    def xrow(op, v):
        A("v_mov_b32 v%d, v%d" % (vT0, v))
        A("s_nop 1")
        A("v_permlane16_swap_b32 v%d, v%d" % (v, vT0))
        A("s_nop 1")
        A("%s v%d, v%d, v%d" % (op, v, v, vT0))
        A("v_mov_b32 v%d, v%d" % (vT0, v))
        A("s_nop 1")
        A("v_permlane32_swap_b32 v%d, v%d" % (v, vT0))
        A("s_nop 1")
        A("%s v%d, v%d, v%d" % (op, v, v, vT0))
    xrow("v_max_f32", vM)
    A("ds_write_b32 v%d, v%d offset:%d" % (vLDSA, vM, OFF_M))
    A("v_bfe_u32 v%d, v0, 3, 1" % vT1)
    A("v_lshlrev_b32 v%d, %d, v%d" % (vT1, int(math.log2(NW * 4)), vT1))
    A("s_waitcnt lgkmcnt(0)")
    A("s_barrier")
    A("ds_read_b128 v[%d:%d], v%d offset:%d" % (vD[0], vD[0] + 3, vT1, OFF_M))
    A("s_waitcnt lgkmcnt(0)")
    for k in (0, 2):
        A("v_max3_f32 v%d, v%d, v%d, v%d" % (vM, vM, vD[0] + k, vD[0] + k + 1))
    A("v_mul_f32 v%d, s%d, v%d" % (vM, sC, vM))
    A("v_sub_f32 v%d, 0, v%d" % (vNMC, vM))
    C("---- exp (software-pipelined into the PV loop)")
    def expo(i):
        A("v_fma_f32 v%d, v%d, s%d, v%d" % (SREG + i, SREG + i, sC, vNMC))
        A("v_exp_f32 v%d, v%d" % (SREG + i, SREG + i))
    lfirst = [True]
    def fin(i):
        if lfirst[0]:
            A("v_mov_b32 v%d, v%d" % (vL, SREG + i)); lfirst[0] = False
        else:
            A("v_add_f32 v%d, v%d, v%d" % (vL, vL, SREG + i))
        A("v_cvt_pk_bf16_f32 v%d, v%d, v%d" % (SREG + i, SREG + i, SREG + i))
    def expand(i, n):
        p = vD[n % 4]
        for r in range(4):
            A("v_and_b32 v%d, v%d, v%d" % (p + r, SREG + i, vMASK + r))
    seq = [("tree", T)] + [("v", i) for i in range(T)]
    NS = len(seq)
    e_next = [0]; f_next = [0]
    def run_exp(k):
        for _ in range(k):
            if e_next[0] < NS:
                expo(seq[e_next[0]][1]); e_next[0] += 1
    def run_fin(upto):
        while f_next[0] < min(upto, NS):
            fin(seq[f_next[0]][1]); f_next[0] += 1
    run_exp(4)
    run_fin(3)
    expand(seq[0][1], 0)
    expand(seq[1][1], 1)
    l_done = [-1]
    vOA = vKT
    SETB = RING
    assert 56 <= 4 * R
    def polls():
        for i in range(1, 8):
            for g in range(2):
                r = SETB + 8 * (i - 1) + 4 * g
                A("buffer_load_dwordx4 v[%d:%d], v%d, s[%d:%d], s%d offen%s sc1" % (r, r + 3, vPOFF, sWS, sWS + 3, sSLOT + i, " offset:1024" if g else ""))
    mp = [0]
    nw = nr + R + 1
    assert nw < NS and nr + R <= T
    def bfly(op, v, t):
        for ctl in ("quad_perm:[1,0,3,2]", "quad_perm:[2,3,0,1]", "row_half_mirror"):
            A("s_nop 1")
            A("%s_dpp v%d, v%d, v%d %s %s" % (op, v, v, v, ctl, DPPF))
    def pvstep(n):
        kind, i = seq[n]
        p = vD[n % 4]
        if kind == "tree":
            r = vVT
        else:
            waitfor(T + i)
            r = slot(T + i)
        A("v_mfma_f32_16x16x32_bf16 v[%d:%d], v[%d:%d], v[%d:%d], v[%d:%d]" % (vACC, vACC + 3, p, p + 3, r, r + 3, vACC, vACC + 3))
        mp[0] = cnt[0]
        if kind != "tree" and T + i + R < 2 * T:
            issue(T + i + R)
        had = e_next[0]
        run_exp(EX)
        run_fin(had if e_next[0] > had else NS)
        if had == e_next[0] and f_next[0] == NS and l_done[0] < 0:
            l_done[0] = n
            xrow("v_add_f32", vL)
            A("ds_write_b32 v%d, v%d offset:%d" % (vLDSA, vL, OFF_L))
            C("epilogue addresses")
            A("v_lshlrev_b32 v%d, 4, v0" % vT0)
            A("v_lshrrev_b32 v%d, 5, v%d" % (vT2, vLANE))
            A("v_lshlrev_b32 v%d, 8, v%d" % (vOA, vT2))
            A("v_lshlrev_b32 v%d, 4, v%d" % (vT2, vT2))
            C("M for head h' = lane/32 (scaled): lanes 0 / 8 hold heads 0 / 1")
            A("v_readlane_b32 s%d, v%d, 0" % (sTMP, vM))
            A("v_readlane_b32 s%d, v%d, 8" % (sTMP2, vM))
            A("v_cmp_gt_u32 vcc, 32, v%d" % vLANE)
            A("v_mov_b32 v%d, s%d" % (vT1, sTMP))
            A("v_mov_b32 v%d, s%d" % (vG + 6, sTMP2))
            A("v_cndmask_b32 v%d, v%d, v%d, vcc" % (vG + 2, vG + 6, vT1))
            C("out byte offset: p*512 + h'*256 + (l%16)*16 + ((l>>4)&1)*8")
            A("v_and_b32 v%d, 15, v%d" % (vT1, vLANE))
            A("v_lshl_add_u32 v%d, v%d, 4, v%d" % (vOA, vT1, vOA))
            A("v_bfe_u32 v%d, v%d, 4, 1" % (vT1, vLANE))
            A("v_lshl_add_u32 v%d, v%d, 3, v%d" % (vOA, vT1, vOA))
            A("s_lshl_b32 s%d, s%d, 9" % (sTMP2, sP))
            C("record byte offset: ((l&7)^s)*32 + h'*16")
            A("v_and_b32 v%d, 7, v%d" % (vT1, vLANE))
            A("v_xor_b32 v%d, s%d, v%d" % (vT1, sS, vT1))
            A("v_lshl_add_u32 v%d, v%d, 5, v%d" % (vRA, vT1, vT2))
        elif l_done[0] >= 0 and n == l_done[0] + 1:
            assert n >= 16
            A("s_waitcnt lgkmcnt(0)")
            A("s_barrier")
            A("ds_read_b128 v[%d:%d], v%d offset:%d" % (vX, vX + 3, vT2, OFF_L))
        elif l_done[0] >= 0 and n == l_done[0] + 2:
            C("wave 0: statistics record {M, l, tag, xcd} of this split (read only through the same L2)")
            c0 = cnt[0]
            w0_begin("L_skip_rec")
            A("v_readfirstlane_b32 s%d, v%d" % (sTAG, vEP))
            A("s_waitcnt lgkmcnt(0)")
            A("v_pk_add_f32 v[%d:%d], v[%d:%d], v[%d:%d]" % (vX, vX + 1, vX, vX + 1, vX + 2, vX + 3))
            A("s_mul_i32 s%d, s%d, 0x9e3779b1" % (sTAG, sTAG))
            A("s_add_u32 s%d, s%d, 0x7f4a7c15" % (sTAG, sTAG))
            A("v_add_f32 v%d, v%d, v%d" % (vG + 6, vX, vX + 1))
            A("v_mov_b32 v%d, s%d" % (vG + 3, sTAG))
            A("v_mov_b32 v%d, s%d" % (vG + 7, sTAG))
            A("v_mov_b32 v%d, v%d" % (vREC, vG + 2))
            A("v_mov_b32 v%d, v%d" % (vREC + 1, vG + 6))
            A("v_mov_b32 v%d, s%d" % (vREC + 2, sTAG))
            A("v_mov_b32 v%d, s%d" % (vREC + 3, sXCC))
            A("s_mov_b32 exec_lo, 1")
            A("s_mov_b32 exec_hi, 1")
            A("buffer_store_dwordx4 v[%d:%d], v%d, s[%d:%d], s%d offen" % (vREC, vREC + 3, vRA, sWS, sWS + 3, sREC))
            A("s_mov_b64 exec, -1")
            LBL("L_skip_rec")
            cnt[0] = c0 + 2
        if n == nr:
            assert l_done[0] >= 0 and n > l_done[0] + 4
            c0 = cnt[0]
            w0_begin("L_skip_rl")
            A("buffer_load_dwordx4 v[%d:%d], v%d, s[%d:%d], s%d offen sc1" % (vREC, vREC + 3, vRA, sWS, sWS + 3, sREC))
            LBL("L_skip_rl")
            cnt[0] = c0 + 2
        if n + 2 < NS:
            assert f_next[0] > n + 2
            expand(seq[n + 2][1], n + 2)
        if n == nw:
            C("wave 0: combine weights of the 8 splits from the records; vcc != 0: records not usable")
            c0 = cnt[0]
            w0_begin("L_skip_w")
            A("v_mov_b32 v%d, v%d" % (vX, vREC))
            A("v_xor_b32 v%d, s%d, v%d" % (vREC + 2, sTAG, vREC + 2))
            A("v_xor_b32 v%d, s%d, v%d" % (vREC + 3, sXCC, vREC + 3))
            bfly("v_max_f32", vX, None)
            A("v_or_b32 v%d, v%d, v%d" % (vREC + 2, vREC + 2, vREC + 3))
            A("v_sub_f32 v%d, v%d, v%d" % (vREC, vREC, vX))
            A("v_exp_f32 v%d, v%d" % (vREC, vREC))
            if force: A("v_cmp_eq_u32 vcc, v%d, v%d" % (vREC + 2, vREC + 2))
            else: A("v_cmp_ne_u32 vcc, 0, v%d" % (vREC + 2))
            A("v_mul_f32 v%d, v%d, v%d" % (vX, vREC, vREC + 1))
            bfly("v_add_f32", vX, None)
            A("v_rcp_f32 v%d, v%d" % (vX, vX))
            A("s_nop 0")
            A("v_mul_f32 v%d, v%d, v%d" % (vX, vREC, vX))
            A("s_nop 1")
            for k in range(8):
                A("v_mov_b32_dpp v%d, v%d row_newbcast:%d %s" % (vW + k, vX, k, DPPF))
            LBL("L_skip_w")
            cnt[0] = c0 + 2
    for n in range(NS):
        if n == NS - KT:
            assert n > l_done[0] + 2
            C("wave 0: arrival ticket of this split")
            c0 = cnt[0]
            w0_begin("L_skip_tk")
            A("s_mov_b64 exec, 1")
            A("buffer_atomic_add v%d, off, s[%d:%d], s%d sc0 sc1" % (vTK, sDBG, sDBG + 3, sDB))
            A("s_mov_b64 exec, -1")
            LBL("L_skip_tk")
            cnt[0] = c0 + 2
        pvstep(n)
    stamp(4)
    A("s_cmp_eq_u32 s%d, 0" % sWV)
    A("s_cbranch_scc1 L_w0")
    C("---- waves 1..3: hand the sums to wave 0")
    pad_since(mp[0], 8)
    A("ds_write_b128 v%d, v[%d:%d] offset:%d" % (vT0, vACC, vACC + 3, OFF_O))
    A("s_waitcnt lgkmcnt(0)")
    A("s_barrier")
    finish()
    LBL("L_w0")
    C("only the holder of the last ticket gathers; the others publish")
    A("v_readfirstlane_b32 s%d, v%d" % (sTMP, vTK))
    A("s_cmp_lg_u32 s%d, s%d" % (sTMP, sFAST))
    A("s_cbranch_scc1 L_nopoll")
    polls()
    LBL("L_nopoll")
    A("s_barrier")
    if not st5: stamp(5)
    B0 = 4
    for w in range(1, NW):
        A("ds_read_b128 v[%d:%d], v%d offset:%d" % (B0 + 4 * w, B0 + 4 * w + 3, vL16, OFF_O + 1024 * w))
    for w in range(1, NW):
        A("s_waitcnt lgkmcnt(%d)" % (NW - 1 - w))
        for hh in (0, 2):
            d = vACC + hh if w < NW - 1 else vG + 2 * hh
            A("v_pk_add_f32 v[%d:%d], v[%d:%d], v[%d:%d]" % (d, d + 1, vACC + hh, vACC + hh + 1, B0 + 4 * w + hh, B0 + 4 * w + hh + 1))
    A("s_cbranch_scc0 L_last")
    C("copy A stays in this XCD's L2 (read only by a gatherer on the same XCD)")
    A("buffer_store_dwordx4 v[%d:%d], v%d, s[%d:%d], s%d offen" % (vG, vG + 3, vL16, sWS, sWS + 3, sSLOT))
    A("buffer_store_dwordx4 v[%d:%d], v%d, s[%d:%d], s%d offen offset:1024" % (vG + 4, vG + 7, vL16, sWS, sWS + 3, sSLOT))
    stamp(6)
    A("s_cbranch_vccnz L_pubb")
    finish()
    LBL("L_last")
    A("s_cbranch_vccnz L_slow")
    LBL("L_sum")
    G = [vOWN] + [SETB + 8 * i for i in range(7)]
    H = [vOWN + 2] + [SETB + 8 * i + 4 for i in range(7)]
    def wsel(k):
        b = vW + (k & ~1)
        return "v[%d:%d] %s" % (b, b + 1, "op_sel:[0,1] op_sel_hi:[1,1]" if k & 1 else "op_sel_hi:[1,0]")
    def pmul(d, s, k): A("v_pk_mul_f32 v[%d:%d], v[%d:%d], %s" % (d, d + 1, s, s + 1, wsel(k)))
    def padd(a, b): A("v_pk_add_f32 v[%d:%d], v[%d:%d], v[%d:%d]" % (a, a + 1, a, a + 1, b, b + 1))
    def tagchk(k): A("v_bitop3_b32 v%d, v%d, v%d, s%d bitop3:0x7e" % (vX + k, G[k] + 3, H[k] + 3, sTAG))
    pmul(G[0], vG, 0); pmul(H[0], vG + 4, 0)
    for k in range(1, 8):
        A("s_waitcnt vmcnt(%d)" % (14 - 2 * k + 1))
        pmul(G[k], G[k], k)
        A("s_waitcnt vmcnt(%d)" % (14 - 2 * k))
        if k == 7: stamp(6)
        pmul(H[k], H[k], k)
        tagchk(k)
        if k == 3: A("v_or3_b32 v%d, v%d, v%d, v%d" % (vX + 1, vX + 1, vX + 2, vX + 3))
        if k == 5: A("v_or3_b32 v%d, v%d, v%d, v%d" % (vX + 1, vX + 1, vX + 4, vX + 5))
        if k == 7: A("v_or3_b32 v%d, v%d, v%d, v%d" % (vX + 1, vX + 1, vX + 6, vX + 7))
        if k & 1:
            padd(G[k - 1], G[k]); padd(H[k - 1], H[k])
        if k == 7: A("v_cmp_ne_u32 vcc, 0, v%d" % (vX + 1))
        if k & 3 == 3:
            padd(G[k - 3], G[k - 1]); padd(H[k - 3], H[k - 1])
    padd(G[0], G[4]); padd(H[0], H[4])
    A("s_cbranch_vccnz L_repoll")
    A("v_cvt_pk_bf16_f32 v16, v%d, v%d" % (G[0], G[0] + 1))
    A("v_cvt_pk_bf16_f32 v17, v%d, v%d" % (H[0], H[0] + 1))
    if st5: stamp(5)
    A("buffer_store_dwordx2 v[16:17], v%d, s[%d:%d], s%d offen%s" % (vOA, sOUT, sOUT + 3, sTMP2, (" " + ost) if ost else ""))
    C("advance the generation word")
    A("s_mov_b64 exec, 1")
    A("buffer_store_dword v%d, off, s[%d:%d], s%d offset:256%s" % (vG + 7, sWS, sWS + 3, sREC, (" " + bump) if bump else ""))
    if stamps:
        A("s_waitcnt vmcnt(0)")
        stamp(7)
        LBL("L_dump")
        A("s_waitcnt vmcnt(0) lgkmcnt(0)")
        A("s_mov_b64 exec, 1")
        if rep >= 0:
            def spin(lbl, sreg):
                LBL(lbl)
                A("s_sleep 4")
                A("s_memrealtime s[%d:%d]" % (sMP, sMP + 1))
                A("s_waitcnt lgkmcnt(0)")
                A("s_sub_u32 s%d, s%d, s%d" % (sTMP2, sMP, sST))
                A("s_cmp_lt_u32 s%d, s%d" % (sTMP2, sreg))
                A("s_cbranch_scc1 %s" % lbl)
            A("s_memrealtime s[%d:%d]" % (sST + 12, sST + 13))
            A("s_movk_i32 s%d, 4000" % sTMP)
            spin("L_sp1", sTMP)
            A("s_and_b32 s%d, s%d, 7" % (sIT, sST + 2))
            A("s_not_b32 s%d, s%d" % (sTMP, sST))
            A("s_not_b32 s%d, s%d" % (sTAG, sST + 8))
            vals = [(sTMP, "x0"), (sST + 8, "x8"), (sTMP, 16), (sST, 17), (sST + 8, 18), (sST + 12, 19), (sST + 6, 20), (sTAG, 21)]
            for ln, (sv, dw) in enumerate(vals):
                A("v_writelane_b32 v12, s%d, %d" % (sv, ln))
                if isinstance(dw, str):
                    A("s_add_u32 s%d, s%d, %d" % (sTMP2, sIT, int(dw[1:])))
                    A("s_lshl_b32 s%d, s%d, 2" % (sTMP2, sTMP2))
                else:
                    A("s_movk_i32 s%d, %d" % (sTMP2, 4 * dw))
                A("v_writelane_b32 v13, s%d, %d" % (sTMP2, ln))
            A("s_mov_b64 exec, 0x%x" % ((1 << len(vals)) - 1))
            A("s_nop 4")
            A("buffer_atomic_umax v12, v13, s[%d:%d], 0 offen sc1" % (sDBG, sDBG + 3))
            A("s_mov_b64 exec, 1")
            A("s_sub_u32 s%d, s%d, s%d" % (sTMP, sST + 8, sST))
            A("v_mov_b32 v14, s%d" % sTMP)
            A("buffer_atomic_add v14, off, s[%d:%d], 0 offset:88 sc1" % (sDBG, sDBG + 3))
            A("s_or_b32 s%d, s2, s%d" % (sTMP, sWV))
            A("s_cmp_lg_u32 s%d, 0" % sTMP)
            A("s_cbranch_scc1 L_end")
            A("s_movk_i32 s%d, 15000" % sTMP)
            spin("L_sp2", sTMP)
            A("buffer_load_dword v12, off, s[%d:%d], 0 offset:%d sc0 sc1" % (sDBG, sDBG + 3, 4 * rep))
            A("buffer_load_dword v13, off, s[%d:%d], 0 offset:%d sc0 sc1" % (sDBG, sDBG + 3, 4 * repb))
            A("s_waitcnt vmcnt(0)")
            A("v_readfirstlane_b32 s%d, v12" % sTMP)
            A("v_readfirstlane_b32 s%d, v13" % sTMP2)
            if rep == 22:
                A("s_lshr_b32 s%d, s%d, 10" % (sTMP, sTMP))
            elif rep in (0, 1, 2, 3, 4, 5, 6, 7, 16, 21):
                A("s_sub_u32 s%d, s%d, s%d" % (sTMP, sTMP2, sTMP))
            else:
                A("s_add_u32 s%d, s%d, s%d" % (sTMP, sTMP, sTMP2))
                A("s_add_u32 s%d, s%d, 1" % (sTMP, sTMP))
            A("s_min_u32 s%d, s%d, 5000" % (sTMP, sTMP))
            A("s_mul_i32 s%d, s%d, %d" % (sTMP, sTMP, ampk))
            A("s_add_u32 s%d, s%d, 16000" % (sTMP, sTMP))
            spin("L_sp3", sTMP)
            A("s_endpgm")
        A("s_mov_b32 s%d, 0x10000000" % (sWS + 2))
        A("s_lshl_b32 s%d, s2, %d" % (sTMP, int(math.log2(NW)) + 6))
        A("s_lshl_b32 s%d, s%d, 6" % (sTMP2, sWV))
        A("s_add_u32 s%d, s%d, s%d" % (sTMP, sTMP, sTMP2))
        A("s_add_u32 s%d, s%d, 0x1000000" % (sTMP, sTMP))
        A("v_mov_b32 v11, 0")
        for k in range(4):
            for i in range(4):
                A("v_mov_b32 v%d, s%d" % (12 + i, sST + 4 * k + i))
            A("buffer_store_dwordx4 v[12:15], v11, s[%d:%d], s%d offen offset:%d" % (sWS, sWS + 3, sTMP, 16 * k))
            A("s_nop 2")
    LBL("L_end")
    A("s_endpgm")
    LBL("L_repoll")
    polls()
    A("s_sub_u32 s%d, s%d, 1" % (sIT, sIT))
    A("s_cmp_lg_u32 s%d, 0" % sIT)
    A("s_cbranch_scc1 L_sum")
    finish()
    LBL("L_pubb")
    C("splits not known to share one L2: copy B is written through")
    A("buffer_store_dwordx4 v[%d:%d], v%d, s[%d:%d], s%d offen offset:2048 sc1" % (vG, vG + 3, vL16, sWS, sWS + 3, sSLOT))
    A("buffer_store_dwordx4 v[%d:%d], v%d, s[%d:%d], s%d offen offset:3072 sc1" % (vG + 4, vG + 7, vL16, sWS, sWS + 3, sSLOT))
    C("last ticket with the splits spread over several XCDs: gather the B copies")
    A("s_lshr_b32 s%d, s%d, 4" % (sFAST, sTMP))
    A("s_and_b32 s%d, s%d, 0xf0f0f0f" % (sFAST, sFAST))
    A("s_and_b32 s%d, s%d, 0xf0f0f0f" % (sTMP, sTMP))
    A("s_add_u32 s%d, s%d, s%d" % (sTMP, sTMP, sFAST))
    A("s_mul_i32 s%d, s%d, 0x1010101" % (sTMP, sTMP))
    A("s_lshr_b32 s%d, s%d, 24" % (sTMP, sTMP))
    A("s_cmp_lg_u32 s%d, %d" % (sTMP, NSPLIT - 1))
    A("s_cbranch_scc1 %s" % ENDL)
    A("v_add_u32 v%d, 2048, v%d" % (vPOFF, vPOFF))
    LBL("L_slowpoll")
    polls()
    A("s_sub_u32 s%d, s%d, 1" % (sIT, sIT))
    A("s_cmp_eq_u32 s%d, 0" % sIT)
    A("s_cbranch_scc1 %s" % ENDL)
    LBL("L_slow")
    C("weights from the statistics that travel with the partial sums")
    A("s_waitcnt vmcnt(0)")
    for k in range(1, 8): tagchk(k)
    A("v_or3_b32 v%d, v%d, v%d, v%d" % (vX + 1, vX + 1, vX + 2, vX + 3))
    A("v_or3_b32 v%d, v%d, v%d, v%d" % (vX + 1, vX + 1, vX + 4, vX + 5))
    A("v_or3_b32 v%d, v%d, v%d, v%d" % (vX + 1, vX + 1, vX + 6, vX + 7))
    A("v_cmp_ne_u32 vcc, 0, v%d" % (vX + 1))
    A("s_cbranch_vccnz L_slowpoll")
    MM = [vG + 2] + [G[k] + 2 for k in range(1, 8)]
    LL = [vG + 6] + [H[k] + 2 for k in range(1, 8)]
    A("v_max3_f32 v8, v%d, v%d, v%d" % (MM[0], MM[1], MM[2]))
    A("v_max3_f32 v9, v%d, v%d, v%d" % (MM[3], MM[4], MM[5]))
    A("v_max3_f32 v8, v8, v%d, v%d" % (MM[6], MM[7]))
    A("v_max_f32 v8, v8, v9")
    for k in range(8):
        A("v_sub_f32 v%d, v%d, v8" % (vW + k, MM[k]))
        A("v_exp_f32 v%d, v%d" % (vW + k, vW + k))
    for k in range(8):
        A("v_mul_f32 v%d, v%d, v%d" % (vX + k, vW + k, LL[k]))
    for st in (1, 2, 4):
        for k in range(0, 8, 2 * st):
            A("v_add_f32 v%d, v%d, v%d" % (vX + k, vX + k, vX + k + st))
    A("v_rcp_f32 v8, v%d" % vX)
    A("s_nop 0")
    for k in range(8):
        A("v_mul_f32 v%d, v%d, v8" % (vW + k, vW + k))
    A("s_branch L_sum")

    out = HEADER
    out += "; @launch grid=(%d,1,1) block=(%d,1,1) lds=%d\n" % (NWG, NW * 64, LDS)
    out += '.amdgcn_target "amdgcn-amd-amdhsa--gfx950"\n.text\n'
    if al: out += ".p2align %d\n" % al
    out += ".globl %s_kernel\n.p2align 8\n.type %s_kernel,@function\n%s_kernel:\n" % (NAME, NAME, NAME)
    out += "\n".join(L) + "\n"
    out += '.section .rodata,"a"\n.p2align 6\n.amdhsa_kernel %s_kernel\n' % NAME
    out += "  .amdhsa_next_free_vgpr %d\n  .amdhsa_next_free_sgpr %d\n  .amdhsa_accum_offset %d\n" % (total_v, 96 if stamps else 64, total_v)
    out += "  .amdhsa_group_segment_fixed_size 0\n  .amdhsa_kernarg_size 72\n  .amdhsa_user_sgpr_count 2\n"
    out += "  .amdhsa_user_sgpr_kernarg_segment_ptr 1\n  .amdhsa_system_sgpr_workgroup_id_x 1\n"
    out += "  .amdhsa_float_denorm_mode_32 3\n"
    out += ".end_amdhsa_kernel\n"
    return out

if __name__ == "__main__":
    names = []
    for spec in sys.argv[1:]:
        kw = {}
        main = False
        for kv in spec.split(","):
            if kv == "MAIN": main = True; continue
            k, v = kv.split("=")
            kw[k] = int(v) if v.lstrip("-").isdigit() else v.replace("+", " ")
        n = "var/g7_" + spec.replace(",", "_").replace("=", "").replace("+", "") + ".s"
        if main: n = "cdna_kernels/%s.s" % NAME
        open("code/" + n, "w").write(gen(**kw))
        names.append(n)
    print(" ".join(names))
    print(str(["bench/bench.py", "bench/raw.py", "bench/flush.s", "bench/icev.s", "cdna_kernels/cdna_launch.py", "cdna_kernels/cdna_unwritten_srd_check.py"] + names).replace("'", '"'))
    print(str(names).replace("'", '"'))
```

```python
import sys, math, struct

NAME = "standalone__tree_speculative_verify_tree_attention_over_candidate_token_tree__decode"

HEADER = """; Kernarg layout for this problem (72 bytes, ptrs only, base s[0:1]):
;   offset  24: d_in[3] k_tree  shape=(2, 16, 1, 128) dtype=bfloat16 strides=(4096, 256, 256, 2) contiguous=True
;   offset  32: d_in[4] v_tree  shape=(2, 16, 1, 128) dtype=bfloat16 strides=(4096, 256, 256, 2) contiguous=True
;   offset  40: d_in[5] tree_mask  shape=(2, 1, 1) dtype=bfloat16 strides=(2, 2, 2) contiguous=True
"""

def f32hex(x):
    return "0x%08x" % struct.unpack("<I", struct.pack("<f", x))[0]

def gen(R=24, cflag="nt", wgmap="xm", stamps=0, KT=10, ost="", kep=30, EX=4, nr=30, NSET=3, E=0, X=0, nowarm=0, WT=0, owarm=0, st4=1, force=0, al=13, cp=0,
        ampk=10, rep=-1, repb=16, st5=0, bump="", R0=0, tks="sc0 sc1", diag=0):
    NW = 4; U = 1
    NSPLIT = 8
    NWG = 32 * NSPLIT
    T = 8192 // NSPLIT // NW // 4
    L = []
    cnt = [0]
    def A(s):
        L.append("    " + s)
        m = s.split()
        cnt[0] += (int(m[1]) + 1) if m[0] == "s_nop" else 1
    def pad_since(pos, need):
        have = cnt[0] - pos
        if have < need:
            A("s_nop %d" % (need - have - 1))
    def C(s): L.append("    ; " + s)
    def LBL(s): L.append(s + ":")

    vKOFF, vVOFF = 1, 2
    vT0, vT1, vT2 = 3, 36, 37
    vQ = 4
    vD = [8, 12, 16, 20]
    vKT, vVT = 24, 28
    vMASK = 32
    vBIAS, vL, vACC, vLANE, vLDSA, vM, vNMC = 38, 39, 40, 44, 45, 46, 47
    vG, vL16, vTK, vEP, vPOFF = 48, 56, 57, 38, 58
    SREG = 59
    RING = (SREG + T + 1 + 3) // 4 * 4
    total_v = (RING + 4 * R + 7) // 8 * 8
    assert total_v <= 256
    vEP = RING + 4 * R
    assert vEP < total_v
    vREC = vQ
    vW, vOWN, vX = 60, 68, 72
    vL4 = 28
    vRA, vOS1, vPL = 25, 26, 27

    OFF_M, OFF_L, OFF_O = 0, 128, 256
    OFF_P = OFF_O + NW * 1024
    LDS = OFF_P + X * 1024
    vPX = 62
    assert X <= 3
    cscale = (128 ** -0.5) * math.log2(math.e)
    RECBASE = NWG * 4096
    WSBYTES = RECBASE + 32 * 512

    sK, sV, sQ, sKT, sVT, sOUT, sDBG, sWS = 4, 8, 12, 16, 20, 24, 28, 32
    sMP = 36
    sXCC, sRS, sDST, sOS = 38, 39, 49, 63
    sP, sS, sWV, sMASK, sC, sTMP, sTMP2, sKO, sVO = 40, 41, 42, 43, 44, 45, 46, 47, 48
    sSLOT = 50
    sDB, sTAG, sIT, sREC, sFAST = 58, 59, 60, 61, 62
    sST = 64
    def stamp(k):
        if stamps:
            A("s_memrealtime s[%d:%d]" % (sST + 2 * k, sST + 2 * k + 1))
    ENDL = "L_dump" if stamps else "L_end"
    def finish():
        if stamps: A("s_branch L_dump")
        else: A("s_endpgm")

    if stamps:
        for k in range(16):
            A("s_mov_b32 s%d, 0" % (sST + k))
        stamp(0)
    A("s_load_dwordx2 s[%d:%d], s[0:1], 8" % (sK, sK + 1))
    A("s_load_dwordx2 s[%d:%d], s[0:1], 0" % (sQ, sQ + 1))
    A("s_load_dwordx2 s[%d:%d], s[0:1], 16" % (sV, sV + 1))
    A("s_load_dwordx2 s[%d:%d], s[0:1], 24" % (sKT, sKT + 1))
    A("s_load_dwordx2 s[%d:%d], s[0:1], 32" % (sVT, sVT + 1))
    A("s_load_dwordx2 s[%d:%d], s[0:1], 40" % (sMP, sMP + 1))
    A("s_cmp_ge_u32 s2, %d" % NWG)
    A("s_cbranch_scc1 L_end")
    if wgmap == "pm":
        A("s_lshr_b32 s%d, s2, 3" % sP)
        A("s_and_b32 s%d, s2, 7" % sS)
        A("s_lshl_b32 s%d, s2, 18" % sKO)
    else:
        C("chunk c = (g&7)*32 + (g>>3) = pair*8 + split: the splits of a pair have equal g%8")
        A("s_and_b32 s%d, s2, 7" % sTMP)
        A("s_lshl_b32 s%d, s%d, 5" % (sTMP, sTMP))
        A("s_lshr_b32 s%d, s2, 3" % sS)
        A("s_or_b32 s%d, s%d, s%d" % (sTMP, sTMP, sS))
        A("s_lshl_b32 s%d, s%d, 18" % (sKO, sTMP))
        A("s_lshr_b32 s%d, s%d, 3" % (sP, sTMP))
        A("s_and_b32 s%d, s%d, 7" % (sS, sS))
    C("K lane offset: w*1024 + ((l%16)/4)*256 + (l%4)*16 + (l/16)*64")
    A("v_and_b32 v%d, 3, v0" % vT2)
    A("v_bfe_u32 v%d, v0, 4, 2" % vT1)
    A("v_lshlrev_b32 v%d, 6, v%d" % (vT1, vT1))
    A("v_lshl_add_u32 v%d, v%d, 4, v%d" % (vT2, vT2, vT1))
    A("v_bfe_u32 v%d, v0, 2, 2" % vT1)
    A("v_lshl_add_u32 v%d, v%d, 8, v%d" % (vKOFF, vT1, vT2))
    A("v_lshrrev_b32 v%d, 6, v0" % vT0)
    A("v_lshl_add_u32 v%d, v%d, 10, v%d" % (vKOFF, vT0, vKOFF))
    C("Q lane offset: h*256 + chunk, h = (l>>3)&1 ; soffset p*512")
    A("v_bfe_u32 v%d, v0, 3, 1" % vT1)
    A("v_lshl_add_u32 v%d, v%d, 8, v%d" % (vT1, vT1, vT2))
    A("s_lshl_b32 s%d, s%d, 9" % (sTMP, sP))
    A("s_mov_b32 s%d, 0x4000000" % (sK + 2))
    A("s_mov_b32 s%d, 0x20000" % (sK + 3))
    A("s_movk_i32 s%d, 0x4000" % (sQ + 2))
    A("s_mov_b32 s%d, 0x20000" % (sQ + 3))
    A("s_mov_b32 s%d, s%d" % (sVO, sKO))
    A("s_waitcnt lgkmcnt(0)")

    issued = []
    def waitfor(tag):
        idx = issued.index(tag)
        n = len(issued) - 1 - idx
        assert n <= 63
        A("s_waitcnt vmcnt(%d)" % n)
    A("buffer_load_dwordx4 v[%d:%d], v%d, s[%d:%d], s%d offen" % (vQ, vQ + 3, vT1, sQ, sQ + 3, sTMP))
    issued.append("q")

    def slot(j): return RING + 4 * (j % R)
    cur = {0: 0, 1: 0}
    def issue(j):
        isK = j < T
        i = j if isK else j - T
        b = i * NW * 1024
        if not isK and i >= T - X:
            b = (T - X) * NW * 1024 + (i - (T - X)) * 1024
        so = sKO if isK else sVO
        k = 0 if isK else 1
        if b - cur[k] >= 4096:
            adv = (b - cur[k]) // 4096 * 4096
            A("s_add_u32 s%d, s%d, 0x%x" % (so, so, adv))
            cur[k] += adv
        imm = b - cur[k]
        r = slot(j)
        cf = cflag.split(",")[0 if isK else -1]
        A("buffer_load_dwordx4 v[%d:%d], v%d, s[%d:%d], s%d offen%s%s" % (
            r, r + 3, vKOFF if isK else vVOFF, sK if isK else sV, (sK if isK else sV) + 3, so,
            (" offset:%d" % imm) if imm else "", (" " + cf) if cf else ""))
        issued.append(j)

    for j in range(R):
        issue(j)

    C("remaining setup while loads fly")
    A("s_load_dword s%d, s[%d:%d], 0" % (sMASK, sMP, sMP + 1))
    A("s_load_dwordx2 s[%d:%d], s[0:1], 48" % (sOUT, sOUT + 1))
    A("s_load_dwordx2 s[%d:%d], s[0:1], 56" % (sDBG, sDBG + 1))
    A("s_load_dwordx2 s[%d:%d], s[0:1], 64" % (sWS, sWS + 1))
    for s, n in ((sV, 0x4000000), (sKT, 8192), (sVT, 8192), (sOUT, 16384), (sDBG, 256), (sWS, WSBYTES)):
        A("s_mov_b32 s%d, 0x%x" % (s + 2, n))
        A("s_mov_b32 s%d, 0x20000" % (s + 3))
    if stamps:
        A("s_getreg_b32 s%d, hwreg(HW_REG_XCC_ID)" % (sST + 2))
        A("s_getreg_b32 s%d, hwreg(HW_REG_HW_ID)" % (sST + 3))
    A("v_and_b32 v%d, 63, v0" % vLANE)
    A("v_lshlrev_b32 v%d, 4, v0" % vVOFF)
    A("v_readfirstlane_b32 s%d, v%d" % (sWV, vT0))
    C("tree tiles")
    A("s_lshl_b32 s%d, s%d, 8" % (sTMP2, sP))
    A("v_and_b32 v%d, 15, v0" % vT1)
    A("v_lshlrev_b32 v%d, 4, v%d" % (vT1, vT1))
    A("buffer_load_dwordx4 v[%d:%d], v%d, s[%d:%d], s%d offen" % (vKT, vKT + 3, vT2, sKT, sKT + 3, sTMP2))
    issued.append("kt")
    A("buffer_load_dwordx4 v[%d:%d], v%d, s[%d:%d], s%d offen" % (vVT, vVT + 3, vT1, sVT, sVT + 3, sTMP2))
    issued.append("vt")
    A("s_mov_b32 s%d, %s" % (sC, f32hex(cscale)))
    C("LDS address for stats: h*NW*4 + w*4 (h=(l>>3)&1)")
    A("v_bfe_u32 v%d, v0, 3, 1" % vT1)
    A("v_lshlrev_b32 v%d, %d, v%d" % (vT1, int(math.log2(NW * 4)), vT1))
    A("v_lshl_add_u32 v%d, v%d, 2, v%d" % (vLDSA, vT0, vT1))
    C("AND masks: reg r: (l%8)==2r -> 0xffff ; (l%8)==2r+1 -> 0xffff0000 ; else 0")
    A("v_and_b32 v%d, 1, v0" % vT0)
    A("v_lshlrev_b32 v%d, 4, v%d" % (vT0, vT0))
    A("v_mov_b32 v%d, 0xffff" % vT1)
    A("v_lshlrev_b32 v%d, v%d, v%d" % (vT1, vT0, vT1))
    A("v_bfe_u32 v%d, v0, 1, 2" % vT0)
    for r in range(4):
        A("v_cmp_eq_u32 vcc, %d, v%d" % (r, vT0))
        A("s_nop 1")
        A("v_cndmask_b32 v%d, 0, v%d, vcc" % (vMASK + r, vT1))
    for i in range(4):
        A("v_mov_b32 v%d, 0" % (vACC + i))
    A("v_lshlrev_b32 v%d, 4, v%d" % (vL16, vLANE))
    C("arrival ticket: one nibble per XCD, so the last arriver also learns whether all splits share its L2")
    A("s_getreg_b32 s%d, hwreg(HW_REG_XCC_ID, 0, 3)" % sXCC)
    A("s_lshl_b32 s%d, s%d, 2" % (sFAST, sXCC))
    A("s_lshl_b32 s%d, 1, s%d" % (sTMP, sFAST))
    A("s_lshl_b32 s%d, %d, s%d" % (sFAST, 15 if force == 1 else 7, sFAST))
    A("v_mov_b32 v%d, s%d" % (vTK, sTMP))
    C("hand-off area of a pair: [share d][source bitrev(s)][16 granules]; split d finishes share d")
    A("s_lshl_b32 s%d, s%d, 15" % (sTMP, sP))
    A("s_brev_b32 s%d, s%d" % (sSLOT, sS))
    A("s_lshr_b32 s%d, s%d, 21" % (sSLOT, sSLOT))
    A("s_or_b32 s%d, s%d, s%d" % (sSLOT, sSLOT, sTMP))
    for i in range(1, 8):
        A("s_xor_b32 s%d, s%d, 0x%x" % (sSLOT + i, sSLOT, ((i & 1) << 10) | ((i & 2) << 8) | ((i & 4) << 6)))
    A("s_lshl_b32 s%d, s%d, 11" % (sDST, sS))
    A("s_or_b32 s%d, s%d, s%d" % (sDST, sDST, sTMP))
    A("s_lshr_b32 s%d, s%d, 12" % (sOS, sVO))
    if rep >= 0:
        A("s_lshl_b32 s%d, s%d, 2" % (sDB, sP))
        A("s_add_u32 s%d, s%d, 128" % (sDB, sDB))
    else:
        A("s_lshl_b32 s%d, s%d, 3" % (sDB, sP))
    A("s_lshl_b32 s%d, s%d, 9" % (sREC, sP))
    A("s_add_u32 s%d, s%d, 0x%x" % (sREC, sREC, RECBASE))
    A("s_lshl_b32 s%d, s%d, 5" % (sRS, sS))
    A("s_add_u32 s%d, s%d, s%d" % (sRS, sRS, sREC))
    A("s_movk_i32 s%d, 0x7fff" % sIT)
    A("s_waitcnt lgkmcnt(0)")
    C("tree bias (raw score units): (1-mask)*(-1e9)/scale for tid<16 of split 0, else -inf")
    A("s_and_b32 s%d, s%d, 16" % (sTMP, sP))
    A("s_lshr_b32 s%d, s%d, s%d" % (sMASK, sMASK, sTMP))
    A("s_lshl_b32 s%d, s%d, 16" % (sMASK, sMASK))
    A("v_mov_b32 v%d, s%d" % (vBIAS, sMASK))
    A("v_sub_f32 v%d, 1.0, v%d" % (vBIAS, vBIAS))
    A("v_mul_f32 v%d, %s, v%d" % (vBIAS, f32hex(-1e9 * math.sqrt(128.0)), vBIAS))
    A("s_cmp_eq_u32 s%d, 0" % sS)
    A("s_cselect_b32 s%d, 16, 0" % sTMP)
    A("v_mov_b32 v%d, 0xff800000" % vT0)
    A("v_cmp_gt_u32 vcc, s%d, v0" % sTMP)
    A("s_nop 1")
    A("v_cndmask_b32 v%d, v%d, v%d, vcc" % (vBIAS, vT0, vBIAS))

    DPPF = "row_mask:0xf bank_mask:0xf"
    def dppsum(dst, d):
        A("v_mov_b32_dpp v%d, v%d quad_perm:[0,0,0,0] %s" % (dst, d, DPPF))
        A("v_add_f32_dpp v%d, v%d, v%d quad_perm:[1,1,1,1] %s" % (dst, d + 1, dst, DPPF))
        A("v_add_f32_dpp v%d, v%d, v%d quad_perm:[2,2,2,2] %s" % (dst, d + 2, dst, DPPF))
        A("v_add_f32_dpp v%d, v%d, v%d quad_perm:[3,3,3,3] %s" % (dst, d + 3, dst, DPPF))
    def w0_begin(lbl):
        A("s_cmp_lg_u32 s%d, 0" % sWV)
        A("s_cbranch_scc1 %s" % lbl)

    C("---- QK phase")
    pend = []
    done_s = []
    first_max = [True]
    def fold_max():
        while len(done_s) >= 2:
            a, b = done_s.pop(0), done_s.pop(0)
            if first_max[0]:
                A("v_max_f32 v%d, v%d, v%d" % (vM, a, b)); first_max[0] = False
            else:
                A("v_max3_f32 v%d, v%d, v%d, v%d" % (vM, vM, a, b))
    tree_pos = min(T - 1, R + 1)
    assert kep + R + 1 < T + 8
    seq = []
    for i in range(T):
        seq.append(("k", i))
        if i == tree_pos: seq.append(("tree", T))
    for n, (kind, i) in enumerate(seq):
        d = vD[n % 4]
        if kind == "tree":
            A("v_mfma_f32_16x16x32_bf16 v[%d:%d], v[%d:%d], v[%d:%d], 0" % (d, d + 3, vKT, vKT + 3, vQ, vQ + 3))
            mpos = cnt[0]
        else:
            waitfor(i)
            if i == 0: stamp(2)
            r = slot(i)
            A("v_mfma_f32_16x16x32_bf16 v[%d:%d], v[%d:%d], v[%d:%d], 0" % (d, d + 3, r, r + 3, vQ, vQ + 3))
            mpos = cnt[0]
            if i + R < 2 * T:
                issue(i + R)
            if i == kep:
                C("wave 0: generation word of this pair (tells this launch's records from older ones);")
                C("        bring the pair's record lines and the own slot lines into L2 (values unused)")
                c0 = cnt[0]
                w0_begin("L_skip_ep")
                A("v_lshlrev_b32 v%d, 2, v%d" % (vG + 4, vLANE))
                A("buffer_load_dword v%d, off, s[%d:%d], s%d offset:256 sc1" % (vEP, sWS, sWS + 3, sREC))
                A("buffer_load_dword v%d, v%d, s[%d:%d], s%d offen sc1" % (vG + 5, vG + 4, sWS, sWS + 3, sREC))
                if nowarm == 2:
                    A("v_lshlrev_b32 v%d, 5, v%d" % (vG + 4, vLANE))
                    A("buffer_load_dword v%d, v%d, s[%d:%d], s%d offen" % (vG, vG + 4, sWS, sWS + 3, sDST))
                elif not nowarm and not WT:
                    A("buffer_load_dwordx4 v[%d:%d], v%d, s[%d:%d], s%d offen" % (vG, vG + 3, vL16, sWS, sWS + 3, sDST))
                    A("buffer_load_dwordx4 v[%d:%d], v%d, s[%d:%d], s%d offen offset:1024" % (vG, vG + 3, vL16, sWS, sWS + 3, sDST))
                if owarm:
                    A("s_lshl_b32 s%d, s%d, 9" % (sTMP2, sP))
                    A("v_lshlrev_b32 v%d, 3, v%d" % (vG + 4, vLANE))
                    A("buffer_load_dword v%d, v%d, s[%d:%d], s%d offen" % (vG + 5, vG + 4, sOUT, sOUT + 3, sTMP2))
                if not KT:
                    C("        ticket of this split")
                    A("s_mov_b64 exec, 1")
                    A("buffer_atomic_add v%d, off, s[%d:%d], s%d %s" % (vTK, sDBG, sDBG + 3, sDB, tks))
                    A("s_mov_b64 exec, -1")
                LBL("L_skip_ep")
                cnt[0] = c0 + 2
        pend.append((SREG + i, d, mpos))
        if len(pend) > 2:
            dst, dd, pos = pend.pop(0)
            pad_since(pos, 8)
            dppsum(dst, dd)
            if dst == SREG + T:
                A("v_add_f32 v%d, v%d, v%d" % (dst, dst, vBIAS))
            done_s.append(dst)
            fold_max()
    assert issued.index("vt") < issued.index(tree_pos)
    for dst, dd, pos in pend:
        pad_since(pos, 8)
        dppsum(dst, dd)
        assert dst != SREG + T
        done_s.append(dst)
    fold_max()
    if done_s:
        A("v_max_f32 v%d, v%d, v%d" % (vM, vM, done_s.pop()))
    C("---- max")
    stamp(3)
    def xrow(op, v):
        A("v_mov_b32 v%d, v%d" % (vT0, v))
        A("s_nop 1")
        A("v_permlane16_swap_b32 v%d, v%d" % (v, vT0))
        A("s_nop 1")
        A("%s v%d, v%d, v%d" % (op, v, v, vT0))
        A("v_mov_b32 v%d, v%d" % (vT0, v))
        A("s_nop 1")
        A("v_permlane32_swap_b32 v%d, v%d" % (v, vT0))
        A("s_nop 1")
        A("%s v%d, v%d, v%d" % (op, v, v, vT0))
    xrow("v_max_f32", vM)
    A("ds_write_b32 v%d, v%d offset:%d" % (vLDSA, vM, OFF_M))
    A("v_bfe_u32 v%d, v0, 3, 1" % vT1)
    A("v_lshlrev_b32 v%d, %d, v%d" % (vT1, int(math.log2(NW * 4)), vT1))
    A("s_waitcnt lgkmcnt(0)")
    A("s_barrier")
    A("ds_read_b128 v[%d:%d], v%d offset:%d" % (vD[0], vD[0] + 3, vT1, OFF_M))
    A("s_waitcnt lgkmcnt(0)")
    for k in (0, 2):
        A("v_max3_f32 v%d, v%d, v%d, v%d" % (vM, vM, vD[0] + k, vD[0] + k + 1))
    A("v_mul_f32 v%d, s%d, v%d" % (vM, sC, vM))
    A("v_sub_f32 v%d, 0, v%d" % (vNMC, vM))
    C("---- exp (software-pipelined into the PV loop)")
    def expo(i):
        A("v_fma_f32 v%d, v%d, s%d, v%d" % (SREG + i, SREG + i, sC, vNMC))
        A("v_exp_f32 v%d, v%d" % (SREG + i, SREG + i))
    lfirst = [True]
    def fin(i):
        if lfirst[0]:
            A("v_mov_b32 v%d, v%d" % (vL, SREG + i)); lfirst[0] = False
        else:
            A("v_add_f32 v%d, v%d, v%d" % (vL, vL, SREG + i))
        A("v_cvt_pk_bf16_f32 v%d, v%d, v%d" % (SREG + i, SREG + i, SREG + i))
    def expand(n):
        p = vD[n % 4]
        i = n - 1
        src = SREG + i if n else SREG + T
        if i >= T - X:
            row, w = divmod(i - (T - X), 4)
            src = vPX + 3 * row + w - 1 if w else SREG + T - X + row
        for r in range(4):
            A("v_and_b32 v%d, v%d, v%d" % (p + r, src, vMASK + r))
    seq = [("tree", T)] + [("v", i) for i in range(T)]
    NS = len(seq)
    e_next = [0]; f_next = [0]
    def run_exp(k):
        for _ in range(k):
            if e_next[0] < NS:
                expo(seq[e_next[0]][1]); e_next[0] += 1
    def run_fin(upto):
        while f_next[0] < min(upto, NS):
            fin(seq[f_next[0]][1]); f_next[0] += 1
    run_exp(4)
    run_fin(3)
    expand(0)
    expand(1)
    l_done = [-1]
    vOA = vKT
    vOS = 80
    SETA = RING + 32
    vPR = 92
    vIN = 92
    assert R == 24 and NSET <= 4
    def poll1(i):
        for g in range(2):
            r = SETA + 8 * (i - 1) + 4 * g
            A("buffer_load_dwordx4 v[%d:%d], v%d, s[%d:%d], s%d offen%s sc1" % (r, r + 3, vPOFF, sWS, sWS + 3, sSLOT + i, " offset:128" if g else ""))
            issued.append("poll")
    def polls():
        for i in range(1, 8): poll1(i)
    mp = [0]
    nw = nr + R + 1
    assert nw < NS and nr + R <= T
    def bfly(op, v, t):
        for ctl in ("quad_perm:[1,0,3,2]", "row_ror:8", "row_ror:4"):
            A("s_nop 1")
            A("%s_dpp v%d, v%d, v%d %s %s" % (op, v, v, v, ctl, DPPF))
    def recload():
        A("buffer_load_dwordx4 v[%d:%d], v%d, s[%d:%d], s%d offen sc1" % (vREC, vREC + 3, vRA, sWS, sWS + 3, sREC))
    def weights(frc):
        A("v_mov_b32 v%d, v%d" % (vX, vREC))
        A("v_xor_b32 v%d, s%d, v%d" % (vREC + 2, sTAG, vREC + 2))
        A("v_xor_b32 v%d, s%d, v%d" % (vREC + 3, sXCC, vREC + 3))
        bfly("v_max_f32", vX, None)
        A("v_or_b32 v%d, v%d, v%d" % (vREC + 2, vREC + 2, vREC + 3))
        if frc == 3:
            A("s_cmp_eq_u32 s%d, 3" % sS)
            A("s_cselect_b32 s%d, 1, 0" % sTMP)
            A("v_or_b32 v%d, s%d, v%d" % (vREC + 2, sTMP, vREC + 2))
        A("v_sub_f32 v%d, v%d, v%d" % (vREC, vREC, vX))
        A("v_exp_f32 v%d, v%d" % (vREC, vREC))
        if frc in (1, 2, 4): A("v_cmp_eq_u32 vcc, v%d, v%d" % (vREC + 2, vREC + 2))
        else: A("v_cmp_ne_u32 vcc, 0, v%d" % (vREC + 2))
        A("v_mul_f32 v%d, v%d, v%d" % (vX, vREC, vREC + 1))
        bfly("v_add_f32", vX, None)
        A("v_rcp_f32 v%d, v%d" % (vX, vX))
        A("s_nop 0")
        A("v_mul_f32 v%d, v%d, v%d" % (vX, vREC, vX))
        A("s_nop 1")
        A("v_mov_b32_dpp v%d, v%d quad_perm:[0,0,0,0] %s" % (vW, vX, DPPF))
        A("v_mov_b32_dpp v%d, v%d quad_perm:[1,1,1,1] %s" % (vW + 1, vX, DPPF))
    def pvstep(n, who="all"):
        kind, i = ("v", n - 1) if n else ("tree", T)
        nv = T + 3 * X if who == "w0" else T - X
        p = vD[n % 4]
        if kind == "tree":
            r = vVT
        else:
            waitfor(T + i)
            r = slot(T + i)
        A("v_mfma_f32_16x16x32_bf16 v[%d:%d], v[%d:%d], v[%d:%d], v[%d:%d]" % (vACC, vACC + 3, p, p + 3, r, r + 3, vACC, vACC + 3))
        mp[0] = cnt[0]
        if kind != "tree" and i + R < nv:
            issue(T + i + R)
        had = e_next[0]
        run_exp(EX)
        run_fin(had if e_next[0] > had else NS)
        if had == e_next[0] and f_next[0] == NS and l_done[0] < 0:
            l_done[0] = n
            xrow("v_add_f32", vL)
            A("ds_write_b32 v%d, v%d offset:%d" % (vLDSA, vL, OFF_L))
            A("v_lshlrev_b32 v%d, 2, v0" % vL4)
            for r in range(X):
                A("ds_write_b32 v%d, v%d offset:%d" % (vL4, SREG + T - X + r, OFF_P + 1024 * r))
            C("epilogue addresses")
            A("v_lshlrev_b32 v%d, 4, v0" % vT0)
            A("v_lshrrev_b32 v%d, 5, v%d" % (vT2, vLANE))
            A("v_lshlrev_b32 v%d, 8, v%d" % (vOA, vT2))
            A("v_lshlrev_b32 v%d, 4, v%d" % (vT2, vT2))
            C("M for head h' = lane/32 (scaled): lanes 0 / 8 hold heads 0 / 1")
            A("v_readlane_b32 s%d, v%d, 0" % (sTMP, vM))
            A("v_readlane_b32 s%d, v%d, 8" % (sTMP2, vM))
            A("v_cmp_gt_u32 vcc, 32, v%d" % vLANE)
            A("v_mov_b32 v%d, s%d" % (vT1, sTMP))
            A("v_mov_b32 v%d, s%d" % (vG + 6, sTMP2))
            A("v_cndmask_b32 v%d, v%d, v%d, vcc" % (vG + 2, vG + 6, vT1))
            C("out byte offset: p*512 + h'*256 + (l%16)*16 + ((l>>4)&1)*8")
            A("v_and_b32 v%d, 15, v%d" % (vT1, vLANE))
            A("v_lshl_add_u32 v%d, v%d, 4, v%d" % (vOA, vT1, vOA))
            A("v_bfe_u32 v%d, v%d, 4, 1" % (vT1, vLANE))
            A("v_lshl_add_u32 v%d, v%d, 3, v%d" % (vOA, vT1, vOA))
            A("s_lshl_b32 s%d, s%d, 9" % (sTMP2, sP))
            C("own share byte offset in out: (l&3)*16 + ((l>>4)&1)*8 + (l>>5)*4")
            A("v_and_b32 v%d, 3, v%d" % (vPL, vLANE))
            A("v_lshlrev_b32 v%d, 4, v%d" % (vPL, vPL))
            A("v_lshl_add_u32 v%d, v%d, 3, v%d" % (vOS1, vT1, vPL))
            A("v_lshl_add_u32 v%d, v%d, 6, v%d" % (vPOFF, vT1, vPL))
            A("v_lshrrev_b32 v%d, 2, v%d" % (vT1, vT2))
            A("v_add_u32 v%d, v%d, v%d" % (vOS1, vOS1, vT1))
            C("publish offset: (h'*4 + (l>>2)%4)*2048 + ((l>>4)&1)*64 + (l&3)*16")
            A("v_lshl_add_u32 v%d, v%d, 9, v%d" % (vPOFF, vT2, vPOFF))
            A("v_bfe_u32 v%d, v%d, 2, 2" % (vT1, vLANE))
            A("v_lshl_add_u32 v%d, v%d, 11, v%d" % (vPOFF, vT1, vPOFF))
            C("inbox offset: ((l>>2)%4)*256 + (l>>4)*64 + (l&3)*16")
            A("v_lshl_add_u32 v%d, v%d, 8, v%d" % (vPL, vT1, vPL))
            A("v_lshrrev_b32 v%d, 4, v%d" % (vT1, vLANE))
            A("v_lshl_add_u32 v%d, v%d, 6, v%d" % (vPL, vT1, vPL))
            C("record byte offset: split(l)*32 + (s/4)*16, split bits = lane bits 0,3,2")
            A("v_and_b32 v%d, 5, v%d" % (vRA, vLANE))
            A("v_bfe_u32 v%d, v%d, 3, 1" % (vT1, vLANE))
            A("v_lshl_add_u32 v%d, v%d, 1, v%d" % (vRA, vT1, vRA))
            A("s_lshr_b32 s%d, s%d, 2" % (sTMP, sS))
            A("v_lshl_add_u32 v%d, v%d, 1, s%d" % (vRA, vRA, sTMP))
            A("v_lshlrev_b32 v%d, 4, v%d" % (vRA, vRA))
        elif l_done[0] >= 0 and n == l_done[0] + 1:
            assert n >= 16
            A("s_waitcnt lgkmcnt(0)")
            A("s_barrier")
            A("ds_read_b128 v[%d:%d], v%d offset:%d" % (vX, vX + 3, vT2, OFF_L))
        elif l_done[0] >= 0 and n == l_done[0] + 2:
            C("wave 0: statistics record {M, l, tag, xcd} of this split (read only through the same L2)")
            c0 = cnt[0]
            w0_begin("L_skip_rec")
            A("v_readfirstlane_b32 s%d, v%d" % (sTAG, vEP))
            A("s_waitcnt lgkmcnt(0)")
            A("v_pk_add_f32 v[%d:%d], v[%d:%d], v[%d:%d]" % (vX, vX + 1, vX, vX + 1, vX + 2, vX + 3))
            A("s_andn2_b32 s%d, s%d, 1" % (sTAG, sTAG))
            A("s_mul_i32 s%d, s%d, 0x9e3779b1" % (sTAG, sTAG))
            A("s_add_u32 s%d, s%d, 0x7f4a7c16" % (sTAG, sTAG))
            A("v_add_f32 v%d, v%d, v%d" % (vG + 6, vX, vX + 1))
            A("v_mov_b32 v%d, s%d" % (vG + 3, sTAG))
            A("v_mov_b32 v%d, s%d" % (vG + 7, sTAG))
            A("v_mov_b32 v%d, v%d" % (vREC, vG + 2))
            A("v_mov_b32 v%d, v%d" % (vREC + 1, vG + 6))
            A("v_mov_b32 v%d, s%d" % (vREC + 2, sTAG))
            A("v_mov_b32 v%d, s%d" % (vREC + 3, sXCC))
            A("s_mov_b32 exec_lo, 1")
            A("s_mov_b32 exec_hi, 1")
            A("buffer_store_dwordx4 v[%d:%d], v%d, s[%d:%d], s%d offen" % (vREC, vREC + 3, vT2, sWS, sWS + 3, sRS))
            A("s_mov_b64 exec, -1")
            for r in range(X):
                for w in range(1, NW):
                    A("ds_read_b32 v%d, v%d offset:%d" % (vPX + 3 * r + w - 1, vL4, OFF_P + 1024 * r + 256 * w))
            LBL("L_skip_rec")
            cnt[0] = c0 + 2
        if n == nr:
            assert l_done[0] >= 0 and n > l_done[0] + 4
            c0 = cnt[0]
            w0_begin("L_skip_rl")
            recload()
            LBL("L_skip_rl")
            cnt[0] = c0 + 2
        if n + 2 < nv + 1:
            assert f_next[0] > min(n + 2, NS - 1)
            expand(n + 2)
        if n == nw and who != "rest":
            C("wave 0: combine weights of the 8 splits from the records; vcc != 0: records not usable")
            c0 = cnt[0]
            if who == "all": w0_begin("L_skip_w")
            weights(force)
            if who == "all":
                LBL("L_skip_w")
                cnt[0] = c0 + 2
    NS0, NSr = NS + 3 * X, NS - X
    n0 = min(T - X - R + 1, NS0 - KT) if X else NS - max(KT, E, 2, WT)
    assert n0 > nr
    for n in range(n0):
        pvstep(n)
    assert n0 > l_done[0] + 2
    A("s_cmp_eq_u32 s%d, 0" % sWV)
    A("s_cbranch_scc1 L_w0")
    C("---- waves 1..3: last tiles, then hand the sums to wave 0")
    snap = (list(issued), dict(cur))
    for n in range(n0, NSr):
        if n == NSr - 1 and not st4: stamp(4)
        pvstep(n, "rest")
    if st4: stamp(4)
    pad_since(mp[0], 8)
    A("ds_write_b128 v%d, v[%d:%d] offset:%d" % (vT0, vACC, vACC + 3, OFF_O))
    A("s_waitcnt lgkmcnt(0)")
    A("s_barrier")
    finish()
    issued[:] = snap[0]; cur.update(snap[1])
    LBL("L_w0")
    C("---- wave 0: last tiles (with the last rows of the other waves)")
    A("s_waitcnt lgkmcnt(0)")
    def padd3(d, a, b): A("v_pk_add_f32 v[%d:%d], v[%d:%d], v[%d:%d]" % (d, d + 1, a, a + 1, b, b + 1))
    def lds_rd():
        A("s_barrier")
        for w in range(1, NW):
            A("ds_read_b128 v[%d:%d], v%d offset:%d" % (vOS + 4 * w - 4, vOS + 4 * w - 1, vL16, OFF_O + 1024 * w))
    def osum():
        A("s_waitcnt lgkmcnt(1)")
        padd3(vOS, vOS, vOS + 4); padd3(vOS + 2, vOS + 2, vOS + 6)
        A("s_waitcnt lgkmcnt(0)")
        padd3(vOS, vOS, vOS + 8); padd3(vOS + 2, vOS + 2, vOS + 10)
    for n in range(n0, NS0 + 1):
        if WT and n == NS0 - WT:
            C("bring the own inbox lines into L2 (values unused)")
            for j in range(2):
                A("buffer_load_dwordx4 v[%d:%d], v%d, s[%d:%d], s%d offen%s" % (vOWN, vOWN + 3, vL16, sWS, sWS + 3, sDST, " offset:1024" if j else ""))
                issued.append("warm")
        if KT and n == NS0 - KT:
            C("arrival ticket of this split")
            A("s_mov_b64 exec, 1")
            A("buffer_atomic_add v%d, off, s[%d:%d], s%d %s" % (vTK, sDBG, sDBG + 3, sDB, tks))
            issued.append("tk")
            A("s_mov_b64 exec, -1")
        if n == NS0 - E: lds_rd()
        if n < NS0: pvstep(n, "w0")
    osum()
    stamp(4)
    pad_since(mp[0], 8)
    padd3(vG, vACC, vOS); padd3(vG + 4, vACC + 2, vOS + 2)
    A("s_cbranch_vccnz L_retry")
    LBL("L_pub")
    def pub(extra):
        A("buffer_store_dwordx4 v[%d:%d], v%d, s[%d:%d], s%d offen%s" % (vG, vG + 3, vPOFF, sWS, sWS + 3, sSLOT, extra))
        A("buffer_store_dwordx4 v[%d:%d], v%d, s[%d:%d], s%d offen offset:128%s" % (vG + 4, vG + 7, vPOFF, sWS, sWS + 3, sSLOT, extra))
    C("copy A stays in this XCD's L2; all 8 splits are known to run on this XCD")
    pub("")
    stamp(6)
    def inbox(r):
        for j in range(2):
            b = vIN + 8 * r + 4 * j
            A("buffer_load_dwordx4 v[%d:%d], v%d, s[%d:%d], s%d offen%s sc1" % (b, b + 3, vPL, sWS, sWS + 3, sDST, " offset:1024" if j else ""))
    def wsel(k):
        b = vW + (k & ~1)
        return "v[%d:%d] %s" % (b, b + 1, "op_sel:[0,1] op_sel_hi:[1,1]" if k & 1 else "op_sel_hi:[1,0]")
    def pmul(d, s, k): A("v_pk_mul_f32 v[%d:%d], v[%d:%d], %s" % (d, d + 1, s, s + 1, wsel(k)))
    def sample(r):
        b = vIN + 8 * r
        A("s_waitcnt vmcnt(%d)" % (2 * NSET - 2))
        A("v_bitop3_b32 v%d, v%d, v%d, s%d bitop3:0x7e" % (vX, b + 3, b + 7, sTAG))
        pmul(16, b, 0)
        pmul(18, b + 4, 1)
        A("v_cmp_lt_u32 vcc, 1, v%d" % vX)
        padd3(16, 16, 18)
    for r in range(NSET): inbox(r)
    sample(0)
    A("s_cbranch_vccnz L_more")
    LBL("L_fin")
    A("s_nop 0")
    for ctl in ("row_ror:8", "row_ror:4"):
        A("v_add_f32_dpp v16, v16, v16 %s %s" % (ctl, DPPF))
        A("v_add_f32_dpp v17, v17, v17 %s %s" % (ctl, DPPF))
        if ctl == "row_ror:8": A("v_readfirstlane_b32 s%d, v%d" % (sTMP, vTK))
    A("v_cvt_pk_bf16_f32 v16, v16, v17")
    stamp(5)
    A("buffer_store_dword v16, v%d, s[%d:%d], s%d offen%s" % (vOS1, sOUT, sOUT + 3, sOS, (" " + ost) if ost else ""))
    if diag:
        A("s_lshr_b32 s%d, s%d, 4" % (sMP, sTMP))
        A("s_and_b32 s%d, s%d, 0xf0f0f0f" % (sMP, sMP))
        A("s_and_b32 s%d, s%d, 0xf0f0f0f" % (sMP + 1, sTMP))
        A("s_add_u32 s%d, s%d, s%d" % (sMP, sMP, sMP + 1))
        A("s_mul_i32 s%d, s%d, 0x1010101" % (sMP, sMP))
        A("s_lshr_b32 s%d, s%d, 24" % (sMP, sMP))
        A("s_cmp_lt_u32 s%d, 8" % sMP)
        A("s_cbranch_scc1 L_dg2")
        A("s_movk_i32 s%d, 1000" % sMP)
        LBL("L_dg1")
        A("buffer_load_dword v18, off, s[%d:%d], s%d sc1" % (sWS, sWS + 3, sREC))
        A("s_waitcnt vmcnt(0)")
        A("s_sub_u32 s%d, s%d, 1" % (sMP, sMP))
        A("s_cbranch_scc0 L_dg1")
        LBL("L_dg2")
    C("holder of the last ticket: shares left undone by their owners, generation word")
    A("s_cmp_lg_u32 s%d, s%d" % (sTMP, sFAST))
    A("s_cbranch_scc1 %s" % ("L_st7" if stamps else "L_end"))
    A("v_cmp_ne_u32 vcc, 0, v%d" % vX)
    A("s_cbranch_vccnz L_slowpoll")
    LBL("L_bump")
    A("v_mov_b32 v16, s%d" % sTAG)
    A("s_mov_b64 exec, 1")
    A("buffer_store_dword v16, off, s[%d:%d], s%d offset:256%s" % (sWS, sWS + 3, sREC, (" " + bump) if bump else ""))
    if stamps: LBL("L_st7")
    if stamps:
        A("s_waitcnt vmcnt(0)")
        stamp(7)
        LBL("L_dump")
        A("s_waitcnt vmcnt(0) lgkmcnt(0)")
        A("s_mov_b64 exec, 1")
        if rep >= 0:
            def spin(lbl, sreg):
                LBL(lbl)
                A("s_sleep 4")
                A("s_memrealtime s[%d:%d]" % (sMP, sMP + 1))
                A("s_waitcnt lgkmcnt(0)")
                A("s_sub_u32 s%d, s%d, s%d" % (sTMP2, sMP, sST))
                A("s_cmp_lt_u32 s%d, s%d" % (sTMP2, sreg))
                A("s_cbranch_scc1 %s" % lbl)
            A("s_memrealtime s[%d:%d]" % (sST + 12, sST + 13))
            A("s_movk_i32 s%d, 4000" % sTMP)
            spin("L_sp1", sTMP)
            A("s_and_b32 s%d, s%d, 7" % (sIT, sST + 2))
            A("s_not_b32 s%d, s%d" % (sTMP, sST))
            A("s_not_b32 s%d, s%d" % (sTAG, sST + 8))
            vals = [(sTMP, "x0"), (sST + 8, "x8"), (sTMP, 16), (sST, 17), (sST + 8, 18), (sST + 12, 19), (sST + 6, 20), (sTAG, 21)]
            for ln, (sv, dw) in enumerate(vals):
                A("v_writelane_b32 v12, s%d, %d" % (sv, ln))
                if isinstance(dw, str):
                    A("s_add_u32 s%d, s%d, %d" % (sTMP2, sIT, int(dw[1:])))
                    A("s_lshl_b32 s%d, s%d, 2" % (sTMP2, sTMP2))
                else:
                    A("s_movk_i32 s%d, %d" % (sTMP2, 4 * dw))
                A("v_writelane_b32 v13, s%d, %d" % (sTMP2, ln))
            A("s_mov_b64 exec, 0x%x" % ((1 << len(vals)) - 1))
            A("s_nop 4")
            A("buffer_atomic_umax v12, v13, s[%d:%d], 0 offen sc1" % (sDBG, sDBG + 3))
            A("s_mov_b64 exec, 1")
            A("s_sub_u32 s%d, s%d, s%d" % (sTMP, sST + 8, sST))
            A("v_mov_b32 v14, s%d" % sTMP)
            A("buffer_atomic_add v14, off, s[%d:%d], 0 offset:88 sc1" % (sDBG, sDBG + 3))
            A("s_or_b32 s%d, s2, s%d" % (sTMP, sWV))
            A("s_cmp_lg_u32 s%d, 0" % sTMP)
            A("s_cbranch_scc1 L_end")
            A("s_movk_i32 s%d, 15000" % sTMP)
            spin("L_sp2", sTMP)
            A("buffer_load_dword v12, off, s[%d:%d], 0 offset:%d sc0 sc1" % (sDBG, sDBG + 3, 4 * rep))
            A("buffer_load_dword v13, off, s[%d:%d], 0 offset:%d sc0 sc1" % (sDBG, sDBG + 3, 4 * repb))
            A("s_waitcnt vmcnt(0)")
            A("v_readfirstlane_b32 s%d, v12" % sTMP)
            A("v_readfirstlane_b32 s%d, v13" % sTMP2)
            if rep == 22:
                A("s_lshr_b32 s%d, s%d, 10" % (sTMP, sTMP))
            elif rep in (0, 1, 2, 3, 4, 5, 6, 7, 16, 21):
                A("s_sub_u32 s%d, s%d, s%d" % (sTMP, sTMP2, sTMP))
            else:
                A("s_add_u32 s%d, s%d, s%d" % (sTMP, sTMP, sTMP2))
                A("s_add_u32 s%d, s%d, 1" % (sTMP, sTMP))
            A("s_min_u32 s%d, s%d, 5000" % (sTMP, sTMP))
            A("s_mul_i32 s%d, s%d, %d" % (sTMP, sTMP, ampk))
            A("s_add_u32 s%d, s%d, 16000" % (sTMP, sTMP))
            spin("L_sp3", sTMP)
            A("s_endpgm")
        A("s_mov_b32 s%d, 0x10000000" % (sWS + 2))
        A("s_lshl_b32 s%d, s2, %d" % (sTMP, int(math.log2(NW)) + 6))
        A("s_lshl_b32 s%d, s%d, 6" % (sTMP2, sWV))
        A("s_add_u32 s%d, s%d, s%d" % (sTMP, sTMP, sTMP2))
        A("s_add_u32 s%d, s%d, 0x1000000" % (sTMP, sTMP))
        A("v_mov_b32 v11, 0")
        for k in range(4):
            for i in range(4):
                A("v_mov_b32 v%d, s%d" % (12 + i, sST + 4 * k + i))
            A("buffer_store_dwordx4 v[12:15], v11, s[%d:%d], s%d offen offset:%d" % (sWS, sWS + 3, sTMP, 16 * k))
            A("s_nop 2")
    LBL("L_end")
    A("s_endpgm")
    LBL("L_more")
    for r in range(NSET):
        inbox(r)
        if r == NSET - 1: A("s_sub_u32 s%d, s%d, 1" % (sIT, sIT))
        sample((r + 1) % NSET)
        A("s_cbranch_vccz L_fin")
    A("s_cbranch_scc0 L_more")
    finish()
    LBL("L_retry")
    recload()
    A("s_waitcnt vmcnt(0)")
    weights(0 if force == 4 else force)
    A("s_cbranch_vccz L_pub")
    C("splits not known to share one L2: mark the own share as undone; copy B is written through")
    A("v_or_b32 v%d, 1, v%d" % (vG + 3, vG + 3))
    A("v_or_b32 v%d, 1, v%d" % (vG + 7, vG + 7))
    A("v_readfirstlane_b32 s%d, v%d" % (sTMP, vTK))
    pub("")
    A("s_cmp_eq_u32 s%d, s%d" % (sTMP, sFAST))
    A("s_cbranch_scc1 L_slowpoll")
    A("v_add_u32 v%d, 0x4000, v%d" % (vPOFF, vPOFF))
    pub(" sc1")
    C("last ticket with the splits spread over several XCDs: gather the B copies")
    A("s_lshr_b32 s%d, s%d, 4" % (sFAST, sTMP))
    A("s_and_b32 s%d, s%d, 0xf0f0f0f" % (sFAST, sFAST))
    A("s_and_b32 s%d, s%d, 0xf0f0f0f" % (sTMP, sTMP))
    A("s_add_u32 s%d, s%d, s%d" % (sTMP, sTMP, sFAST))
    A("s_mul_i32 s%d, s%d, 0x1010101" % (sTMP, sTMP))
    A("s_lshr_b32 s%d, s%d, 24" % (sTMP, sTMP))
    A("s_cmp_lg_u32 s%d, %d" % (sTMP, NSPLIT - 1))
    A("s_cbranch_scc1 %s" % ENDL)
    if diag: A("s_movk_i32 s%d, 0x3fff" % sIT)
    LBL("L_slowpoll")
    C("all shares at once, weights from the statistics that travel with the partial sums")
    G = [vG] + [SETA + 8 * i for i in range(7)]
    H = [vG + 4] + [SETA + 8 * i + 4 for i in range(7)]
    def tagchk(k): A("v_bitop3_b32 v%d, v%d, v%d, s%d bitop3:0x7e" % (vX + k, G[k] + 3, H[k] + 3, sTAG))
    polls()
    A("s_sub_u32 s%d, s%d, 1" % (sIT, sIT))
    A("s_cbranch_scc1 %s" % ENDL)
    A("s_waitcnt vmcnt(0)")
    for k in range(1, 8): tagchk(k)
    A("v_or3_b32 v%d, v%d, v%d, v%d" % (vX + 1, vX + 1, vX + 2, vX + 3))
    A("v_or3_b32 v%d, v%d, v%d, v%d" % (vX + 1, vX + 1, vX + 4, vX + 5))
    A("v_or3_b32 v%d, v%d, v%d, v%d" % (vX + 1, vX + 1, vX + 6, vX + 7))
    A("v_cmp_lt_u32 vcc, 1, v%d" % (vX + 1))
    A("s_cbranch_vccnz L_slowpoll")
    MM = [vG + 2] + [G[k] + 2 for k in range(1, 8)]
    LL = [vG + 6] + [H[k] + 2 for k in range(1, 8)]
    A("v_max3_f32 v8, v%d, v%d, v%d" % (MM[0], MM[1], MM[2]))
    A("v_max3_f32 v9, v%d, v%d, v%d" % (MM[3], MM[4], MM[5]))
    A("v_max3_f32 v8, v8, v%d, v%d" % (MM[6], MM[7]))
    A("v_max_f32 v8, v8, v9")
    for k in range(8):
        A("v_sub_f32 v%d, v%d, v8" % (vW + k, MM[k]))
        A("v_exp_f32 v%d, v%d" % (vW + k, vW + k))
    for k in range(8):
        A("v_mul_f32 v%d, v%d, v%d" % (vX + k, vW + k, LL[k]))
    for st in (1, 2, 4):
        for k in range(0, 8, 2 * st):
            A("v_add_f32 v%d, v%d, v%d" % (vX + k, vX + k, vX + k + st))
    A("v_rcp_f32 v8, v%d" % vX)
    A("s_nop 0")
    for k in range(8):
        A("v_mul_f32 v%d, v%d, v8" % (vW + k, vW + k))
    for k in range(8):
        pmul(G[k], G[k], k); pmul(H[k], H[k], k)
    for st in (1, 2, 4):
        for k in range(0, 8, 2 * st):
            padd3(G[k], G[k], G[k + st]); padd3(H[k], H[k], H[k + st])
    A("v_cvt_pk_bf16_f32 v16, v%d, v%d" % (G[0], G[0] + 1))
    A("v_cvt_pk_bf16_f32 v17, v%d, v%d" % (H[0], H[0] + 1))
    A("buffer_store_dwordx2 v[16:17], v%d, s[%d:%d], s%d offen" % (vOA, sOUT, sOUT + 3, sTMP2))
    A("s_nop 1")
    A("s_branch L_bump")

    out = HEADER
    out += "; @launch grid=(%d,1,1) block=(%d,1,1) lds=%d\n" % (NWG, NW * 64, LDS)
    out += '.amdgcn_target "amdgcn-amd-amdhsa--gfx950"\n.text\n'
    if al: out += ".p2align %d\n" % al
    out += ".globl %s_kernel\n.p2align 8\n.type %s_kernel,@function\n%s_kernel:\n" % (NAME, NAME, NAME)
    out += "\n".join(L) + "\n"
    out += '.section .rodata,"a"\n.p2align 6\n.amdhsa_kernel %s_kernel\n' % NAME
    out += "  .amdhsa_next_free_vgpr %d\n  .amdhsa_next_free_sgpr %d\n  .amdhsa_accum_offset %d\n" % (total_v, 96 if stamps else 64, total_v)
    out += "  .amdhsa_group_segment_fixed_size 0\n  .amdhsa_kernarg_size 72\n  .amdhsa_user_sgpr_count 2\n"
    out += "  .amdhsa_user_sgpr_kernarg_segment_ptr 1\n  .amdhsa_system_sgpr_workgroup_id_x 1\n"
    out += "  .amdhsa_float_denorm_mode_32 3\n"
    out += ".end_amdhsa_kernel\n"
    return out

if __name__ == "__main__":
    names = []
    for spec in sys.argv[1:]:
        kw = {}
        main = False
        for kv in spec.split(","):
            if kv == "MAIN": main = True; continue
            k, v = kv.split("=")
            kw[k] = int(v) if v.lstrip("-").isdigit() else v.replace("+", " ")
        n = "var/g12_" + spec.replace(",", "_").replace("=", "").replace("+", "") + ".s"
        if main: n = "cdna_kernels/%s.s" % NAME
        open("code/" + n, "w").write(gen(**kw))
        names.append(n)
    print(" ".join(names))
    print(str(["bench/bench.py", "bench/raw.py", "bench/flush.s", "bench/icev.s", "cdna_kernels/cdna_launch.py", "cdna_kernels/cdna_unwritten_srd_check.py"] + names).replace("'", '"'))
    print(str(names).replace("'", '"'))
```

```python
import sys, math, struct

NAME = "standalone__tree_speculative_verify_tree_attention_over_candidate_token_tree__decode"

HEADER = """; Kernarg layout for this problem (72 bytes, ptrs only, base s[0:1]):
;   offset  24: d_in[3] k_tree  shape=(2, 16, 1, 128) dtype=bfloat16 strides=(4096, 256, 256, 2) contiguous=True
;   offset  32: d_in[4] v_tree  shape=(2, 16, 1, 128) dtype=bfloat16 strides=(4096, 256, 256, 2) contiguous=True
;   offset  40: d_in[5] tree_mask  shape=(2, 1, 1) dtype=bfloat16 strides=(2, 2, 2) contiguous=True
"""

def f32hex(x):
    return "0x%08x" % struct.unpack("<I", struct.pack("<f", x))[0]

def gen(R=24, cflag="nt", wgmap="xm", stamps=0, KT=10, ost="", kep=30, EX=4, nr=30, NSET=3, E=0, X=0, nowarm=0, WT=0, owarm=0, st4=1, force=0, al=13, cp=0,
        ampk=10, rep=-1, repb=16, st5=0, bump="", R0=0, tks="sc0 sc1", diag=0, sb=0, asym=0, par=0, dirty=0, dfl="", swarm=0, pbit=0, notk=0, ka=0, su=0):
    NW = 4; U = 1
    NSPLIT = 8
    NWG = 32 * NSPLIT
    T = 8192 // NSPLIT // NW // 4
    L = []
    cnt = [0]
    def A(s):
        L.append("    " + s)
        m = s.split()
        cnt[0] += (int(m[1]) + 1) if m[0] == "s_nop" else 1
    def pad_since(pos, need):
        have = cnt[0] - pos
        if have < need:
            A("s_nop %d" % (need - have - 1))
    def C(s): L.append("    ; " + s)
    def LBL(s): L.append(s + ":")

    vKOFF, vVOFF = 1, 2
    vT0, vT1, vT2 = 3, 36, 37
    vQ = 4
    vD = [8, 12, 16, 20]
    vKT, vVT = 24, 28
    vMASK = 32
    vBIAS, vL, vACC, vLANE, vLDSA, vM, vNMC = 38, 39, 40, 44, 45, 46, 47
    vG, vL16, vTK, vEP, vPOFF = 48, 56, 57, 38, 58
    vOR, vFF = 52, 64
    SREG = 59
    RING = (SREG + T + 1 + 3) // 4 * 4
    total_v = (RING + 4 * R + 7) // 8 * 8
    assert total_v <= 256
    vEP = RING + 4 * R
    assert vEP < total_v
    vREC = vQ
    vW, vOWN, vX = 60, 68, 72
    vL4 = 28
    vRA, vOS1, vPL = 25, 26, 27

    OFF_M, OFF_L, OFF_O = 0, 128, 256
    OFF_P = OFF_O + NW * 1024
    LDS = OFF_P + X * 1024
    vPX = 62
    assert X <= 3
    cscale = (128 ** -0.5) * math.log2(math.e)
    RECBASE = NWG * 4096
    WSBYTES = RECBASE + 0x4000 + 32 * 512

    sK, sV, sQ, sKT, sVT, sOUT, sDBG, sWS = 4, 8, 12, 16, 20, 24, 28, 32
    sMP = 36
    sXCC, sRS, sDST, sOS = 38, 39, 49, 63
    sP, sS, sWV, sMASK, sC, sTMP, sTMP2, sKO, sVO = 40, 41, 42, 43, 44, 45, 46, 47, 48
    sSLOT, sPB, sTB = 50, 51, 52
    sDB, sTAG, sIT, sREC, sFAST = 58, 59, 60, 61, 62
    sST = 64
    sHO, sSKIP = 80, 81
    H = 2 * asym
    def stamp(k, early=0):
        if sb and k in (3, 5, 6, 7) and not early: return
        if early and not sb: return
        if stamps:
            A("s_memrealtime s[%d:%d]" % (sST + 2 * k, sST + 2 * k + 1))
    ENDL = "L_dump" if stamps else "L_end"
    def finish():
        if stamps: A("s_branch L_dump")
        else: A("s_endpgm")

    if stamps and sb != 3:
        for k in range(16):
            A("s_mov_b32 s%d, 0" % (sST + k))
    stamp(0)
    sKA = 80 if stamps else 64
    if ka == 4:
        A("s_load_dwordx16 s[%d:%d], s[0:1], 0" % (sKA, sKA + 15))
    elif ka == 5:
        A("s_load_dwordx2 s[%d:%d], s[0:1], 8" % (sK, sK + 1))
        A("s_load_dwordx16 s[%d:%d], s[0:1], 0" % (sKA, sKA + 15))
    else:
        A("s_load_dwordx2 s[%d:%d], s[0:1], 8" % (sK, sK + 1))
        A("s_load_dwordx2 s[%d:%d], s[0:1], 0" % (sQ, sQ + 1))
    def ka2():
        A("s_load_dwordx2 s[%d:%d], s[0:1], 16" % (sV, sV + 1))
        A("s_load_dwordx2 s[%d:%d], s[0:1], 24" % (sKT, sKT + 1))
        A("s_load_dwordx2 s[%d:%d], s[0:1], 32" % (sVT, sVT + 1))
        A("s_load_dwordx2 s[%d:%d], s[0:1], 40" % (sMP, sMP + 1))
    def ka3(k=3):
        A("s_load_dwordx2 s[%d:%d], s[0:1], 48" % (sOUT, sOUT + 1))
        A("s_load_dwordx2 s[%d:%d], s[0:1], 56" % (sDBG, sDBG + 1))
        if k == 3: A("s_load_dwordx2 s[%d:%d], s[0:1], 64" % (sWS, sWS + 1))
    if ka not in (1, 4, 5): ka2()
    if ka == 2: ka3()
    if ka == 3: ka3(2)
    A("s_cmp_ge_u32 s2, %d" % NWG)
    A("s_cbranch_scc1 L_end")
    if wgmap == "pm":
        A("s_lshr_b32 s%d, s2, 3" % sP)
        A("s_and_b32 s%d, s2, 7" % sS)
        A("s_lshl_b32 s%d, s2, 18" % sKO)
    else:
        C("chunk c = (g&7)*32 + (g>>3) = pair*8 + split: the splits of a pair have equal g%8")
        A("s_and_b32 s%d, s2, 7" % sTMP)
        A("s_lshl_b32 s%d, s%d, 5" % (sTMP, sTMP))
        A("s_lshr_b32 s%d, s2, 3" % sS)
        A("s_or_b32 s%d, s%d, s%d" % (sTMP, sTMP, sS))
        A("s_lshl_b32 s%d, s%d, 18" % (sKO, sTMP))
        A("s_lshr_b32 s%d, s%d, 3" % (sP, sTMP))
        A("s_and_b32 s%d, s%d, 7" % (sS, sS))
    if sb == 3: stamp(6, 1)
    C("K lane offset: w*1024 + ((l%16)/4)*256 + (l%4)*16 + (l/16)*64")
    A("v_and_b32 v%d, 3, v0" % vT2)
    A("v_bfe_u32 v%d, v0, 4, 2" % vT1)
    A("v_lshlrev_b32 v%d, 6, v%d" % (vT1, vT1))
    A("v_lshl_add_u32 v%d, v%d, 4, v%d" % (vT2, vT2, vT1))
    A("v_bfe_u32 v%d, v0, 2, 2" % vT1)
    A("v_lshl_add_u32 v%d, v%d, 8, v%d" % (vKOFF, vT1, vT2))
    A("v_lshrrev_b32 v%d, 6, v0" % vT0)
    A("v_lshl_add_u32 v%d, v%d, 10, v%d" % (vKOFF, vT0, vKOFF))
    C("Q lane offset: h*256 + chunk, h = (l>>3)&1 ; soffset p*512")
    A("v_bfe_u32 v%d, v0, 3, 1" % vT1)
    A("v_lshl_add_u32 v%d, v%d, 8, v%d" % (vT1, vT1, vT2))
    A("s_lshl_b32 s%d, s%d, 9" % (sTMP, sP))
    A("s_mov_b32 s%d, 0x4000000" % (sK + 2))
    A("s_mov_b32 s%d, 0x20000" % (sK + 3))
    A("s_movk_i32 s%d, 0x4000" % (sQ + 2))
    A("s_mov_b32 s%d, 0x20000" % (sQ + 3))
    A("s_mov_b32 s%d, s%d" % (sVO, sKO))
    if asym:
        A("s_getreg_b32 s%d, hwreg(HW_REG_XCC_ID, %d, 1)" % (sSKIP, pbit))
        A("s_xor_b32 s%d, s%d, 0x%x" % (sHO, sKO, (32 << pbit) << 18))
        A("s_add_u32 s%d, s%d, 0x%x" % (sHO, sHO, (T - asym) * 4096))
        A("s_cmp_eq_u32 s%d, %d" % (sSKIP, par))
        A("s_cselect_b32 s%d, s%d, 0x40000000" % (sHO, sHO))
        A("s_cselect_b32 s%d, 0, 0x40000000" % sSKIP)
        A("s_mov_b32 s%d, 0x4000000" % (sV + 2))
        A("s_mov_b32 s%d, 0x20000" % (sV + 3))
        A("v_lshlrev_b32 v%d, 4, v0" % vVOFF)
    if sb == 3: stamp(5, 1)
    A("s_waitcnt lgkmcnt(0)")
    stamp(3, 1)

    issued = []
    def waitfor(tag):
        idx = issued.index(tag)
        n = len(issued) - 1 - idx
        assert n <= 63
        A("s_waitcnt vmcnt(%d)" % n)
    def qload():
        A("buffer_load_dwordx4 v[%d:%d], v%d, s[%d:%d], s%d offen" % (vQ, vQ + 3, vT1, sQ, sQ + 3, sTMP))
        issued.append("q")
    if ka == 4:
        A("s_mov_b64 s[%d:%d], s[%d:%d]" % (sQ, sQ + 1, sKA, sKA + 1))
        A("s_mov_b64 s[%d:%d], s[%d:%d]" % (sK, sK + 1, sKA + 2, sKA + 3))
    if ka != 5: qload()

    def slot(j): return RING + 4 * ((j + H) % R)
    cur = {0: 0, 1: 0}
    def issue(j):
        if j < 0:
            k = (j + H) // asym; i = (j + H) % asym
            if i: A("s_add_u32 s%d, s%d, 0x1000" % (sHO, sHO))
            if k and i == 0 and asym > 1: A("s_sub_u32 s%d, s%d, 0x%x" % (sHO, sHO, (asym - 1) * 4096))
            r = slot(j)
            A("buffer_load_dwordx4 v[%d:%d], v%d, s[%d:%d], s%d offen %s" % (r, r + 3, vVOFF if k else vKOFF, sV if k else sK, (sV if k else sK) + 3, sHO, cflag))
            issued.append(j)
            return
        if asym and j in (T - asym, 2 * T - asym):
            so = sKO if j < T else sVO
            A("s_add_u32 s%d, s%d, s%d" % (so, so, sSKIP))
        isK = j < T
        i = j if isK else j - T
        b = i * NW * 1024
        if not isK and i >= T - X:
            b = (T - X) * NW * 1024 + (i - (T - X)) * 1024
        so = sKO if isK else sVO
        k = 0 if isK else 1
        if b - cur[k] >= 4096:
            adv = (b - cur[k]) // 4096 * 4096
            A("s_add_u32 s%d, s%d, 0x%x" % (so, so, adv))
            cur[k] += adv
        imm = b - cur[k]
        r = slot(j)
        cf = cflag.split(",")[0 if isK else -1]
        A("buffer_load_dwordx4 v[%d:%d], v%d, s[%d:%d], s%d offen%s%s" % (
            r, r + 3, vKOFF if isK else vVOFF, sK if isK else sV, (sK if isK else sV) + 3, so,
            (" offset:%d" % imm) if imm else "", (" " + cf) if cf else ""))
        issued.append(j)

    for j in range(-H, (su or R) - H):
        issue(j)
        if ka == 1 and j == 7: ka2()
        if ka == 1 and j == R - H - 1: A("s_waitcnt lgkmcnt(0)")
        if ka == 5 and j == 0:
            A("s_mov_b64 s[%d:%d], s[%d:%d]" % (sQ, sQ + 1, sKA, sKA + 1))
            qload()
        if sb == 3 and j == 7: stamp(7, 1)
        if sb == 2 and j == 3: stamp(5, 1)
        if sb == 2 and j == 7:
            stamp(6, 1); waitfor(0); stamp(7, 1)

    if sb == 1: stamp(5, 1)
    C("remaining setup while loads fly")
    if ka >= 4:
        for k, d in enumerate((sV, sKT, sVT, sMP, sOUT, sDBG)):
            A("s_mov_b64 s[%d:%d], s[%d:%d]" % (d, d + 1, sKA + 4 + 2 * k, sKA + 5 + 2 * k))
    A("s_load_dword s%d, s[%d:%d], 0" % (sMASK, sMP, sMP + 1))
    if ka < 2: ka3()
    if ka >= 3: A("s_load_dwordx2 s[%d:%d], s[0:1], 64" % (sWS, sWS + 1))
    for s, n in ((sV, 0x4000000), (sKT, 8192), (sVT, 8192), (sOUT, 16384), (sDBG, 256), (sWS, WSBYTES)):
        A("s_mov_b32 s%d, 0x%x" % (s + 2, n))
        A("s_mov_b32 s%d, 0x20000" % (s + 3))
    if stamps:
        A("s_getreg_b32 s%d, hwreg(HW_REG_XCC_ID)" % (sST + 2))
        A("s_getreg_b32 s%d, hwreg(HW_REG_HW_ID)" % (sST + 3))
    A("v_and_b32 v%d, 63, v0" % vLANE)
    A("v_lshlrev_b32 v%d, 4, v0" % vVOFF)
    A("v_readfirstlane_b32 s%d, v%d" % (sWV, vT0))
    C("tree tiles")
    A("s_lshl_b32 s%d, s%d, 8" % (sTMP2, sP))
    A("v_and_b32 v%d, 15, v0" % vT1)
    A("v_lshlrev_b32 v%d, 4, v%d" % (vT1, vT1))
    A("buffer_load_dwordx4 v[%d:%d], v%d, s[%d:%d], s%d offen" % (vKT, vKT + 3, vT2, sKT, sKT + 3, sTMP2))
    issued.append("kt")
    A("buffer_load_dwordx4 v[%d:%d], v%d, s[%d:%d], s%d offen" % (vVT, vVT + 3, vT1, sVT, sVT + 3, sTMP2))
    issued.append("vt")
    A("s_mov_b32 s%d, %s" % (sC, f32hex(cscale)))
    C("LDS address for stats: h*NW*4 + w*4 (h=(l>>3)&1)")
    A("v_bfe_u32 v%d, v0, 3, 1" % vT1)
    A("v_lshlrev_b32 v%d, %d, v%d" % (vT1, int(math.log2(NW * 4)), vT1))
    A("v_lshl_add_u32 v%d, v%d, 2, v%d" % (vLDSA, vT0, vT1))
    C("AND masks: reg r: (l%8)==2r -> 0xffff ; (l%8)==2r+1 -> 0xffff0000 ; else 0")
    A("v_and_b32 v%d, 1, v0" % vT0)
    A("v_lshlrev_b32 v%d, 4, v%d" % (vT0, vT0))
    A("v_mov_b32 v%d, 0xffff" % vT1)
    A("v_lshlrev_b32 v%d, v%d, v%d" % (vT1, vT0, vT1))
    A("v_bfe_u32 v%d, v0, 1, 2" % vT0)
    for r in range(4):
        A("v_cmp_eq_u32 vcc, %d, v%d" % (r, vT0))
        A("s_nop 1")
        A("v_cndmask_b32 v%d, 0, v%d, vcc" % (vMASK + r, vT1))
    for i in range(4):
        A("v_mov_b32 v%d, 0" % (vACC + i))
    A("v_lshlrev_b32 v%d, 4, v%d" % (vL16, vLANE))
    C("arrival ticket: one nibble per XCD, so the last arriver also learns whether all splits share its L2")
    A("s_getreg_b32 s%d, hwreg(HW_REG_XCC_ID, 0, 3)" % sXCC)
    A("s_lshl_b32 s%d, s%d, 2" % (sFAST, sXCC))
    A("s_lshl_b32 s%d, 1, s%d" % (sTMP, sFAST))
    A("s_lshl_b32 s%d, %d, s%d" % (sFAST, 15 if force == 1 else 7, sFAST))
    A("v_mov_b32 v%d, s%d" % (vTK, sTMP))
    C("hand-off area of a pair: [share d][source s][8 granules]; split d finishes share d")
    A("s_lshl_b32 s%d, s%d, 15" % (sPB, sP))
    A("s_lshl_b32 s%d, s%d, 7" % (sSLOT, sS))
    A("s_or_b32 s%d, s%d, s%d" % (sSLOT, sSLOT, sPB))
    A("s_lshl_b32 s%d, s%d, 10" % (sDST, sS))
    A("s_or_b32 s%d, s%d, s%d" % (sDST, sDST, sPB))
    A("s_lshr_b32 s%d, s%d, 12" % (sOS, sVO))
    if rep >= 0:
        A("s_lshl_b32 s%d, s%d, 2" % (sDB, sP))
        A("s_add_u32 s%d, s%d, 128" % (sDB, sDB))
    else:
        A("s_lshl_b32 s%d, s%d, 3" % (sDB, sP))
    A("s_lshl_b32 s%d, s%d, 9" % (sREC, sP))
    A("s_add_u32 s%d, s%d, 0x%x" % (sREC, sREC, RECBASE))
    A("s_lshl_b32 s%d, s%d, 5" % (sRS, sS))
    A("s_add_u32 s%d, s%d, s%d" % (sRS, sRS, sREC))
    A("s_movk_i32 s%d, 0x7fff" % sIT)
    if su:
        for j in range(su - H, R - H): issue(j)
    A("s_waitcnt lgkmcnt(0)")
    if sb == 1: stamp(6, 1)
    C("tree bias (raw score units): (1-mask)*(-1e9)/scale for tid<16 of split 0, else -inf")
    A("s_and_b32 s%d, s%d, 16" % (sTMP, sP))
    A("s_lshr_b32 s%d, s%d, s%d" % (sMASK, sMASK, sTMP))
    A("s_lshl_b32 s%d, s%d, 16" % (sMASK, sMASK))
    A("v_mov_b32 v%d, s%d" % (vBIAS, sMASK))
    A("v_sub_f32 v%d, 1.0, v%d" % (vBIAS, vBIAS))
    A("v_mul_f32 v%d, %s, v%d" % (vBIAS, f32hex(-1e9 * math.sqrt(128.0)), vBIAS))
    A("s_cmp_eq_u32 s%d, 0" % sS)
    A("s_cselect_b32 s%d, 16, 0" % sTMP)
    A("v_mov_b32 v%d, 0xff800000" % vT0)
    A("v_cmp_gt_u32 vcc, s%d, v0" % sTMP)
    A("s_nop 1")
    A("v_cndmask_b32 v%d, v%d, v%d, vcc" % (vBIAS, vT0, vBIAS))

    DPPF = "row_mask:0xf bank_mask:0xf"
    def dppsum(dst, d):
        A("v_mov_b32_dpp v%d, v%d quad_perm:[0,0,0,0] %s" % (dst, d, DPPF))
        A("v_add_f32_dpp v%d, v%d, v%d quad_perm:[1,1,1,1] %s" % (dst, d + 1, dst, DPPF))
        A("v_add_f32_dpp v%d, v%d, v%d quad_perm:[2,2,2,2] %s" % (dst, d + 2, dst, DPPF))
        A("v_add_f32_dpp v%d, v%d, v%d quad_perm:[3,3,3,3] %s" % (dst, d + 3, dst, DPPF))
    def w0_begin(lbl):
        A("s_cmp_lg_u32 s%d, 0" % sWV)
        A("s_cbranch_scc1 %s" % lbl)

    for j in range(-H, 0):
        waitfor(j)
        A("v_mov_b32 v%d, v%d" % (vT0, slot(j)))
        issue(j + R)
    C("---- QK phase")
    pend = []
    done_s = []
    first_max = [True]
    def fold_max():
        while len(done_s) >= 2:
            a, b = done_s.pop(0), done_s.pop(0)
            if first_max[0]:
                A("v_max_f32 v%d, v%d, v%d" % (vM, a, b)); first_max[0] = False
            else:
                A("v_max3_f32 v%d, v%d, v%d, v%d" % (vM, vM, a, b))
    tree_pos = min(T - 1, R + 1)
    assert kep + R + 1 < T + 8
    seq = []
    for i in range(T):
        seq.append(("k", i))
        if i == tree_pos: seq.append(("tree", T))
    for n, (kind, i) in enumerate(seq):
        d = vD[n % 4]
        if kind == "tree":
            A("v_mfma_f32_16x16x32_bf16 v[%d:%d], v[%d:%d], v[%d:%d], 0" % (d, d + 3, vKT, vKT + 3, vQ, vQ + 3))
            mpos = cnt[0]
        else:
            if i == 0 and sb == 1:
                waitfor("q"); stamp(7, 1)
            waitfor("q" if ka == 5 and i == 0 else i)
            if i == 0: stamp(2)
            r = slot(i)
            A("v_mfma_f32_16x16x32_bf16 v[%d:%d], v[%d:%d], v[%d:%d], 0" % (d, d + 3, r, r + 3, vQ, vQ + 3))
            mpos = cnt[0]
            if i + R < 2 * T:
                issue(i + R)
            if i == kep:
                C("wave 0: generation word of this pair (tells this launch's records from older ones);")
                C("        bring the pair's record lines and the own slot lines into L2 (values unused)")
                c0 = cnt[0]
                w0_begin("L_skip_ep")
                A("v_lshlrev_b32 v%d, 2, v%d" % (vG + 4, vLANE))
                A("buffer_load_dword v%d, off, s[%d:%d], s%d offset:256 sc1" % (vEP, sWS, sWS + 3, sREC))
                A("buffer_load_dword v%d, v%d, s[%d:%d], s%d offen sc1" % (vG + 5, vG + 4, sWS, sWS + 3, sREC))
                if not nowarm and not WT:
                    A("buffer_load_dwordx4 v[%d:%d], v%d, s[%d:%d], s%d offen" % (vG, vG + 3, vL16, sWS, sWS + 3, sDST))
                if owarm:
                    A("s_lshl_b32 s%d, s%d, 9" % (sTMP2, sP))
                    A("v_lshlrev_b32 v%d, 3, v%d" % (vG + 4, vLANE))
                    A("buffer_load_dword v%d, v%d, s[%d:%d], s%d offen" % (vG + 5, vG + 4, sOUT, sOUT + 3, sTMP2))
                if not KT:
                    C("        ticket of this split")
                    A("s_mov_b64 exec, 1")
                    A("buffer_atomic_add v%d, off, s[%d:%d], s%d %s" % (vTK, sDBG, sDBG + 3, sDB, tks))
                    A("s_mov_b64 exec, -1")
                LBL("L_skip_ep")
                cnt[0] = c0 + 2
        pend.append((SREG + i, d, mpos))
        if len(pend) > 2:
            dst, dd, pos = pend.pop(0)
            pad_since(pos, 8)
            dppsum(dst, dd)
            if dst == SREG + T:
                A("v_add_f32 v%d, v%d, v%d" % (dst, dst, vBIAS))
            done_s.append(dst)
            fold_max()
    assert issued.index("vt") < issued.index(tree_pos)
    for dst, dd, pos in pend:
        pad_since(pos, 8)
        dppsum(dst, dd)
        assert dst != SREG + T
        done_s.append(dst)
    fold_max()
    if done_s:
        A("v_max_f32 v%d, v%d, v%d" % (vM, vM, done_s.pop()))
    C("---- max")
    stamp(3)
    def xrow(op, v):
        A("v_mov_b32 v%d, v%d" % (vT0, v))
        A("s_nop 1")
        A("v_permlane16_swap_b32 v%d, v%d" % (v, vT0))
        A("s_nop 1")
        A("%s v%d, v%d, v%d" % (op, v, v, vT0))
        A("v_mov_b32 v%d, v%d" % (vT0, v))
        A("s_nop 1")
        A("v_permlane32_swap_b32 v%d, v%d" % (v, vT0))
        A("s_nop 1")
        A("%s v%d, v%d, v%d" % (op, v, v, vT0))
    xrow("v_max_f32", vM)
    A("ds_write_b32 v%d, v%d offset:%d" % (vLDSA, vM, OFF_M))
    A("v_bfe_u32 v%d, v0, 3, 1" % vT1)
    A("v_lshlrev_b32 v%d, %d, v%d" % (vT1, int(math.log2(NW * 4)), vT1))
    A("s_waitcnt lgkmcnt(0)")
    A("s_barrier")
    A("ds_read_b128 v[%d:%d], v%d offset:%d" % (vD[0], vD[0] + 3, vT1, OFF_M))
    A("s_waitcnt lgkmcnt(0)")
    for k in (0, 2):
        A("v_max3_f32 v%d, v%d, v%d, v%d" % (vM, vM, vD[0] + k, vD[0] + k + 1))
    A("v_mul_f32 v%d, s%d, v%d" % (vM, sC, vM))
    A("v_sub_f32 v%d, 0, v%d" % (vNMC, vM))
    C("---- exp (software-pipelined into the PV loop)")
    def expo(i):
        A("v_fma_f32 v%d, v%d, s%d, v%d" % (SREG + i, SREG + i, sC, vNMC))
        A("v_exp_f32 v%d, v%d" % (SREG + i, SREG + i))
    lfirst = [True]
    def fin(i):
        if lfirst[0]:
            A("v_mov_b32 v%d, v%d" % (vL, SREG + i)); lfirst[0] = False
        else:
            A("v_add_f32 v%d, v%d, v%d" % (vL, vL, SREG + i))
        A("v_cvt_pk_bf16_f32 v%d, v%d, v%d" % (SREG + i, SREG + i, SREG + i))
    def expand(n):
        p = vD[n % 4]
        i = n - 1
        src = SREG + i if n else SREG + T
        if i >= T - X:
            row, w = divmod(i - (T - X), 4)
            src = vPX + 3 * row + w - 1 if w else SREG + T - X + row
        for r in range(4):
            A("v_and_b32 v%d, v%d, v%d" % (p + r, src, vMASK + r))
    seq = [("tree", T)] + [("v", i) for i in range(T)]
    NS = len(seq)
    e_next = [0]; f_next = [0]
    def run_exp(k):
        for _ in range(k):
            if e_next[0] < NS:
                expo(seq[e_next[0]][1]); e_next[0] += 1
    def run_fin(upto):
        while f_next[0] < min(upto, NS):
            fin(seq[f_next[0]][1]); f_next[0] += 1
    run_exp(4)
    run_fin(3)
    expand(0)
    expand(1)
    l_done = [-1]
    vOA = vKT
    vOS = 80
    SETA = RING + 32
    vPR = 92
    vIN = 92
    assert R == 24 and NSET <= 4
    mp = [0]
    nw = nr + R + 1
    assert nw < NS and nr + R <= T
    def bfly(op, v, t):
        for ctl in ("quad_perm:[1,0,3,2]", "row_ror:8", "row_ror:4"):
            A("s_nop 1")
            A("%s_dpp v%d, v%d, v%d %s %s" % (op, v, v, v, ctl, DPPF))
    def recload():
        A("buffer_load_dwordx4 v[%d:%d], v%d, s[%d:%d], s%d offen sc1" % (vREC, vREC + 3, vRA, sWS, sWS + 3, sREC))
    def weights(frc, vREC=vREC, vW=vW, chk=1):
        A("v_mov_b32 v%d, v%d" % (vX, vREC))
        if chk:
            A("v_xor_b32 v%d, s%d, v%d" % (vREC + 2, sTAG, vREC + 2))
            A("v_xor_b32 v%d, s%d, v%d" % (vREC + 3, sXCC, vREC + 3))
        bfly("v_max_f32", vX, None)
        if chk: A("v_or_b32 v%d, v%d, v%d" % (vREC + 2, vREC + 2, vREC + 3))
        if frc == 3:
            A("s_cmp_eq_u32 s%d, 3" % sS)
            A("s_cselect_b32 s%d, 1, 0" % sTMP)
            A("v_or_b32 v%d, s%d, v%d" % (vREC + 2, sTMP, vREC + 2))
        A("v_sub_f32 v%d, v%d, v%d" % (vREC, vREC, vX))
        A("v_exp_f32 v%d, v%d" % (vREC, vREC))
        if not chk: A("s_nop 0")
        elif frc in (1, 2, 4): A("v_cmp_eq_u32 vcc, v%d, v%d" % (vREC + 2, vREC + 2))
        else: A("v_cmp_ne_u32 vcc, 0, v%d" % (vREC + 2))
        A("v_mul_f32 v%d, v%d, v%d" % (vX, vREC, vREC + 1))
        bfly("v_add_f32", vX, None)
        A("v_rcp_f32 v%d, v%d" % (vX, vX))
        A("s_nop 0")
        A("v_mul_f32 v%d, v%d, v%d" % (vX, vREC, vX))
        A("s_nop 1")
        A("v_mov_b32_dpp v%d, v%d quad_perm:[0,0,0,0] %s" % (vW, vX, DPPF))
        A("v_mov_b32_dpp v%d, v%d quad_perm:[1,1,1,1] %s" % (vW + 1, vX, DPPF))
    def pvstep(n, who="all"):
        kind, i = ("v", n - 1) if n else ("tree", T)
        nv = T + 3 * X if who == "w0" else T - X
        p = vD[n % 4]
        if kind == "tree":
            r = vVT
        else:
            waitfor(T + i)
            r = slot(T + i)
        A("v_mfma_f32_16x16x32_bf16 v[%d:%d], v[%d:%d], v[%d:%d], v[%d:%d]" % (vACC, vACC + 3, p, p + 3, r, r + 3, vACC, vACC + 3))
        mp[0] = cnt[0]
        if kind != "tree" and i + R < nv:
            issue(T + i + R)
        had = e_next[0]
        run_exp(EX)
        run_fin(had if e_next[0] > had else NS)
        if had == e_next[0] and f_next[0] == NS and l_done[0] < 0:
            l_done[0] = n
            xrow("v_add_f32", vL)
            A("ds_write_b32 v%d, v%d offset:%d" % (vLDSA, vL, OFF_L))
            A("v_lshlrev_b32 v%d, 2, v0" % vL4)
            for r in range(X):
                A("ds_write_b32 v%d, v%d offset:%d" % (vL4, SREG + T - X + r, OFF_P + 1024 * r))
            C("epilogue addresses")
            A("v_lshlrev_b32 v%d, 4, v0" % vT0)
            A("v_lshrrev_b32 v%d, 5, v%d" % (vT2, vLANE))
            A("v_lshlrev_b32 v%d, 4, v%d" % (vT2, vT2))
            C("M for head h' = lane/32 (scaled): lanes 0 / 8 hold heads 0 / 1")
            A("v_readlane_b32 s%d, v%d, 0" % (sTMP, vM))
            A("v_readlane_b32 s%d, v%d, 8" % (sTMP2, vM))
            A("v_cmp_gt_u32 vcc, 32, v%d" % vLANE)
            A("v_mov_b32 v%d, s%d" % (vT1, sTMP))
            A("v_mov_b32 v%d, s%d" % (vOR + 1, sTMP2))
            A("v_cndmask_b32 v%d, v%d, v%d, vcc" % (vOR, vOR + 1, vT1))
            A("v_bfe_u32 v%d, v%d, 4, 1" % (vT1, vLANE))
            C("own share byte offset in out: (l&3)*16 + ((l>>4)&1)*8 + (l>>5)*4")
            A("v_and_b32 v%d, 3, v%d" % (vPL, vLANE))
            A("v_lshlrev_b32 v%d, 4, v%d" % (vPL, vPL))
            A("v_lshl_add_u32 v%d, v%d, 3, v%d" % (vOS1, vT1, vPL))
            A("v_lshl_add_u32 v%d, v%d, 6, v%d" % (vPOFF, vT1, vPL))
            A("v_lshrrev_b32 v%d, 2, v%d" % (vT1, vT2))
            A("v_add_u32 v%d, v%d, v%d" % (vOS1, vOS1, vT1))
            C("u = (l>>5)*4 + (l>>2)%4; inbox offset u*128 + c, publish offset u*1024 + c, c = ((l>>4)&1)*64 + (l&3)*16")
            A("v_bfe_u32 v%d, v%d, 2, 2" % (vRA, vLANE))
            A("v_add_u32 v%d, v%d, v%d" % (vT1, vT1, vRA))
            A("v_lshl_add_u32 v%d, v%d, 7, v%d" % (vPL, vT1, vPOFF))
            A("v_lshl_add_u32 v%d, v%d, 10, v%d" % (vPOFF, vT1, vPOFF))
            C("record byte offset: split(l)*32 + (s/4)*16, split = (l>>2)%4 + (l&1)*4")
            A("v_and_b32 v%d, 1, v%d" % (vT1, vLANE))
            A("v_lshl_add_u32 v%d, v%d, 2, v%d" % (vRA, vT1, vRA))
            A("s_lshr_b32 s%d, s%d, 2" % (sTMP, sS))
            A("v_lshl_add_u32 v%d, v%d, 1, s%d" % (vRA, vRA, sTMP))
            A("v_lshlrev_b32 v%d, 4, v%d" % (vRA, vRA))
        elif l_done[0] >= 0 and n == l_done[0] + 1:
            assert n >= 16
            A("s_waitcnt lgkmcnt(0)")
            A("s_barrier")
            A("ds_read_b128 v[%d:%d], v%d offset:%d" % (vX, vX + 3, vT2, OFF_L))
        elif l_done[0] >= 0 and n == l_done[0] + 2:
            C("wave 0: statistics record {M, l, tag, xcd} of this split (read only through the same L2)")
            c0 = cnt[0]
            w0_begin("L_skip_rec")
            A("v_readfirstlane_b32 s%d, v%d" % (sTAG, vEP))
            A("s_waitcnt lgkmcnt(0)")
            A("v_pk_add_f32 v[%d:%d], v[%d:%d], v[%d:%d]" % (vX, vX + 1, vX, vX + 1, vX + 2, vX + 3))
            A("s_andn2_b32 s%d, s%d, 1" % (sTAG, sTAG))
            A("s_mul_i32 s%d, s%d, 0x9e3779b1" % (sTAG, sTAG))
            A("s_add_u32 s%d, s%d, 0x7f4a7c16" % (sTAG, sTAG))
            A("v_add_f32 v%d, v%d, v%d" % (vOR + 1, vX, vX + 1))
            A("v_mov_b32 v%d, s%d" % (vOR + 2, sTAG))
            A("v_mov_b32 v%d, s%d" % (vOR + 3, sXCC))
            A("v_mov_b32 v%d, 0xff" % vFF)
            A("s_mov_b32 exec_lo, 1")
            A("s_mov_b32 exec_hi, 1")
            A("buffer_store_dwordx4 v[%d:%d], v%d, s[%d:%d], s%d offen" % (vOR, vOR + 3, vT2, sWS, sWS + 3, sRS))
            A("s_mov_b64 exec, -1")
            C("the tag travels in the low bytes of the four sums of a granule")
            for k in range(4):
                A("s_bfe_u32 s%d, s%d, 0x%x" % (sTB + k, sTAG, 0x80000 | (8 * k)))
            for r in range(X):
                for w in range(1, NW):
                    A("ds_read_b32 v%d, v%d offset:%d" % (vPX + 3 * r + w - 1, vL4, OFF_P + 1024 * r + 256 * w))
            LBL("L_skip_rec")
            cnt[0] = c0 + 2
        if n == nr:
            assert l_done[0] >= 0 and n > l_done[0] + 4
            c0 = cnt[0]
            w0_begin("L_skip_rl")
            recload()
            LBL("L_skip_rl")
            cnt[0] = c0 + 2
        if n + 2 < nv + 1:
            assert f_next[0] > min(n + 2, NS - 1)
            expand(n + 2)
        if n == nw and who != "rest":
            C("wave 0: combine weights of the 8 splits from the records; vcc != 0: records not usable")
            c0 = cnt[0]
            if who == "all": w0_begin("L_skip_w")
            weights(force)
            if who == "all":
                LBL("L_skip_w")
                cnt[0] = c0 + 2
    NS0, NSr = NS + 3 * X, NS - X
    n0 = min(T - X - R + 1, NS0 - KT) if X else NS - max(KT, E, 2, WT)
    assert n0 > nr
    for n in range(n0):
        pvstep(n)
    assert n0 > l_done[0] + 2
    A("s_cmp_eq_u32 s%d, 0" % sWV)
    A("s_cbranch_scc1 L_w0")
    C("---- waves 1..3: last tiles, then hand the sums to wave 0")
    snap = (list(issued), dict(cur))
    for n in range(n0, NSr):
        if n == NSr - 1 and not st4: stamp(4)
        pvstep(n, "rest")
    if st4: stamp(4)
    pad_since(mp[0], 8)
    A("ds_write_b128 v%d, v[%d:%d] offset:%d" % (vT0, vACC, vACC + 3, OFF_O))
    A("s_waitcnt lgkmcnt(0)")
    A("s_barrier")
    if dirty:
        A("s_mov_b32 s%d, 0x8000000" % (sWS + 2))
        A("s_lshl_b32 s%d, s2, 16" % sTMP)
        A("s_add_u32 s%d, s%d, 0x2000000" % (sTMP, sTMP))
        for k in range(dirty):
            A("buffer_store_dwordx4 v[%d:%d], v%d, s[%d:%d], s%d offen%s" % (vACC, vACC + 3, vT0, sWS, sWS + 3, sTMP, (" " + dfl) if dfl else ""))
            A("s_add_u32 s%d, s%d, 0x1000" % (sTMP, sTMP))
    finish()
    issued[:] = snap[0]; cur.update(snap[1])
    LBL("L_w0")
    C("---- wave 0: last tiles (with the last rows of the other waves)")
    A("s_waitcnt lgkmcnt(0)")
    def padd3(d, a, b): A("v_pk_add_f32 v[%d:%d], v[%d:%d], v[%d:%d]" % (d, d + 1, a, a + 1, b, b + 1))
    def lds_rd():
        A("s_barrier")
        for w in range(1, NW):
            A("ds_read_b128 v[%d:%d], v%d offset:%d" % (vOS + 4 * w - 4, vOS + 4 * w - 1, vL16, OFF_O + 1024 * w))
    def osum():
        A("s_waitcnt lgkmcnt(1)")
        padd3(vOS, vOS, vOS + 4); padd3(vOS + 2, vOS + 2, vOS + 6)
        pad_since(mp[0], 8)
        padd3(vOS, vOS, vACC); padd3(vOS + 2, vOS + 2, vACC + 2)
        A("s_waitcnt lgkmcnt(0)")
    for n in range(n0, NS0 + 1):
        if WT and n == NS0 - WT:
            C("bring the own inbox lines into L2 (values unused)")
            A("buffer_load_dwordx4 v[%d:%d], v%d, s[%d:%d], s%d offen" % (vOWN, vOWN + 3, vL16, sWS, sWS + 3, sDST))
            issued.append("warm")
        if notk and n == NS0 - KT:
            A("s_cmp_eq_u32 s%d, 0" % sS)
            A("s_cselect_b32 s%d, s%d, 0" % (sTMP, sFAST))
            A("v_mov_b32 v%d, s%d" % (vTK, sTMP))
        elif KT and n == NS0 - KT:
            C("arrival ticket of this split")
            A("s_mov_b64 exec, 1")
            A("buffer_atomic_add v%d, off, s[%d:%d], s%d %s" % (vTK, sDBG, sDBG + 3, sDB, tks))
            issued.append("tk")
            A("s_mov_b64 exec, -1")
        if n == NS0 - E: lds_rd()
        if n < NS0: pvstep(n, "w0")
    osum()
    stamp(4)
    padd3(vG, vOS + 8, vOS); padd3(vG + 2, vOS + 10, vOS + 2)
    for k in range(4):
        A("v_bfi_b32 v%d, v%d, s%d, v%d" % (vG + k, vFF, sTB + k, vG + k))
    A("s_cbranch_vccnz L_retry")
    LBL("L_pub")
    def pub(extra):
        A("buffer_store_dwordx4 v[%d:%d], v%d, s[%d:%d], s%d offen%s" % (vG, vG + 3, vPOFF, sWS, sWS + 3, sSLOT, extra))
    C("copy A stays in this XCD's L2; all 8 splits are known to run on this XCD")
    pub("")
    stamp(6)
    def inbox(r):
        b = vIN + 4 * r
        A("buffer_load_dwordx4 v[%d:%d], v%d, s[%d:%d], s%d offen sc1" % (b, b + 3, vPL, sWS, sWS + 3, sDST))
    def untag(b, x):
        for k in (0, 2, 1, 3):
            A("v_xor_b32 v%d, s%d, v%d" % (b + k, sTB + k, b + k))
        A("v_permlane32_swap_b32 v%d, v%d" % (b, b + 2))
        A("v_or3_b32 v%d, v%d, v%d, v%d" % (x, b, b + 1, b + 3))
        A("v_permlane32_swap_b32 v%d, v%d" % (b + 1, b + 3))
        A("v_bitop3_b32 v%d, v%d, v%d, v%d bitop3:0xa8" % (x, x, b + 2, vFF))
    def wsum1(b, w): A("v_pk_mul_f32 v[16:17], v[%d:%d], v[%d:%d] op_sel_hi:[1,0]" % (b, b + 1, w, w + 1))
    def wsum2(b, w): A("v_pk_fma_f32 v[16:17], v[%d:%d], v[%d:%d], v[16:17] op_sel:[0,1,0] op_sel_hi:[1,1,1]" % (b + 2, b + 3, w, w + 1))
    def sample(r):
        b = vIN + 4 * r
        A("s_waitcnt vmcnt(%d)" % (NSET - 1))
        untag(b, vX)
        wsum1(b, vW)
        A("v_cmp_lt_u32 vcc, 1, v%d" % vX)
        wsum2(b, vW)
    for r in range(NSET): inbox(r)
    sample(0)
    A("s_cbranch_vccnz L_more")
    LBL("L_fin")
    A("s_nop 0")
    for ctl in ("row_ror:8", "row_ror:4"):
        A("v_add_f32_dpp v16, v16, v16 %s %s" % (ctl, DPPF))
        A("v_add_f32_dpp v17, v17, v17 %s %s" % (ctl, DPPF))
        if ctl == "row_ror:8": A("v_readfirstlane_b32 s%d, v%d" % (sTMP, vTK))
    A("v_cvt_pk_bf16_f32 v16, v16, v17")
    stamp(5)
    A("buffer_store_dword v16, v%d, s[%d:%d], s%d offen%s" % (vOS1, sOUT, sOUT + 3, sOS, (" " + ost) if ost else ""))
    if diag:
        A("s_lshr_b32 s%d, s%d, 4" % (sMP, sTMP))
        A("s_and_b32 s%d, s%d, 0xf0f0f0f" % (sMP, sMP))
        A("s_and_b32 s%d, s%d, 0xf0f0f0f" % (sMP + 1, sTMP))
        A("s_add_u32 s%d, s%d, s%d" % (sMP, sMP, sMP + 1))
        A("s_mul_i32 s%d, s%d, 0x1010101" % (sMP, sMP))
        A("s_lshr_b32 s%d, s%d, 24" % (sMP, sMP))
        A("s_cmp_lt_u32 s%d, 8" % sMP)
        A("s_cbranch_scc1 L_dg2")
        A("s_movk_i32 s%d, 1000" % sMP)
        LBL("L_dg1")
        A("buffer_load_dword v18, off, s[%d:%d], s%d sc1" % (sWS, sWS + 3, sREC))
        A("s_waitcnt vmcnt(0)")
        A("s_sub_u32 s%d, s%d, 1" % (sMP, sMP))
        A("s_cbranch_scc0 L_dg1")
        LBL("L_dg2")
    C("holder of the last ticket: shares left undone by their owners, generation word")
    A("s_cmp_lg_u32 s%d, s%d" % (sTMP, sFAST))
    A("s_cbranch_scc1 %s" % ("L_st7" if stamps else "L_end"))
    A("v_cmp_ne_u32 vcc, 0, v%d" % vX)
    A("s_cbranch_vccnz L_slow")
    LBL("L_bump")
    A("v_mov_b32 v16, s%d" % sTAG)
    A("s_mov_b64 exec, 1")
    A("buffer_store_dword v16, off, s[%d:%d], s%d offset:256%s" % (sWS, sWS + 3, sREC, (" " + bump) if bump else ""))
    if stamps: LBL("L_st7")
    if stamps:
        A("s_waitcnt vmcnt(0)")
        stamp(7)
        LBL("L_dump")
        A("s_waitcnt vmcnt(0) lgkmcnt(0)")
        A("s_mov_b64 exec, 1")
        if rep >= 0:
            def spin(lbl, sreg):
                LBL(lbl)
                A("s_sleep 4")
                A("s_memrealtime s[%d:%d]" % (sMP, sMP + 1))
                A("s_waitcnt lgkmcnt(0)")
                A("s_sub_u32 s%d, s%d, s%d" % (sTMP2, sMP, sST))
                A("s_cmp_lt_u32 s%d, s%d" % (sTMP2, sreg))
                A("s_cbranch_scc1 %s" % lbl)
            A("s_memrealtime s[%d:%d]" % (sST + 12, sST + 13))
            A("s_movk_i32 s%d, 4000" % sTMP)
            spin("L_sp1", sTMP)
            A("s_and_b32 s%d, s%d, 7" % (sIT, sST + 2))
            A("s_not_b32 s%d, s%d" % (sTMP, sST))
            A("s_not_b32 s%d, s%d" % (sTAG, sST + 8))
            vals = [(sTMP, "x0"), (sST + 8, "x8"), (sTMP, 16), (sST, 17), (sST + 8, 18), (sST + 12, 19), (sST + 6, 20), (sTAG, 21)]
            for ln, (sv, dw) in enumerate(vals):
                A("v_writelane_b32 v12, s%d, %d" % (sv, ln))
                if isinstance(dw, str):
                    A("s_add_u32 s%d, s%d, %d" % (sTMP2, sIT, int(dw[1:])))
                    A("s_lshl_b32 s%d, s%d, 2" % (sTMP2, sTMP2))
                else:
                    A("s_movk_i32 s%d, %d" % (sTMP2, 4 * dw))
                A("v_writelane_b32 v13, s%d, %d" % (sTMP2, ln))
            A("s_mov_b64 exec, 0x%x" % ((1 << len(vals)) - 1))
            A("s_nop 4")
            A("buffer_atomic_umax v12, v13, s[%d:%d], 0 offen sc1" % (sDBG, sDBG + 3))
            A("s_mov_b64 exec, 1")
            A("s_sub_u32 s%d, s%d, s%d" % (sTMP, sST + 8, sST))
            A("v_mov_b32 v14, s%d" % sTMP)
            A("buffer_atomic_add v14, off, s[%d:%d], 0 offset:88 sc1" % (sDBG, sDBG + 3))
            A("s_or_b32 s%d, s2, s%d" % (sTMP, sWV))
            A("s_cmp_lg_u32 s%d, 0" % sTMP)
            A("s_cbranch_scc1 L_end")
            A("s_movk_i32 s%d, 15000" % sTMP)
            spin("L_sp2", sTMP)
            A("buffer_load_dword v12, off, s[%d:%d], 0 offset:%d sc0 sc1" % (sDBG, sDBG + 3, 4 * rep))
            A("buffer_load_dword v13, off, s[%d:%d], 0 offset:%d sc0 sc1" % (sDBG, sDBG + 3, 4 * repb))
            A("s_waitcnt vmcnt(0)")
            A("v_readfirstlane_b32 s%d, v12" % sTMP)
            A("v_readfirstlane_b32 s%d, v13" % sTMP2)
            if rep == 22:
                A("s_lshr_b32 s%d, s%d, 10" % (sTMP, sTMP))
            elif rep in (0, 1, 2, 3, 4, 5, 6, 7, 16, 21):
                A("s_sub_u32 s%d, s%d, s%d" % (sTMP, sTMP2, sTMP))
            else:
                A("s_add_u32 s%d, s%d, s%d" % (sTMP, sTMP, sTMP2))
                A("s_add_u32 s%d, s%d, 1" % (sTMP, sTMP))
            A("s_min_u32 s%d, s%d, 5000" % (sTMP, sTMP))
            A("s_mul_i32 s%d, s%d, %d" % (sTMP, sTMP, ampk))
            A("s_add_u32 s%d, s%d, 16000" % (sTMP, sTMP))
            spin("L_sp3", sTMP)
            A("s_endpgm")
        A("s_mov_b32 s%d, 0x10000000" % (sWS + 2))
        A("s_lshl_b32 s%d, s2, %d" % (sTMP, int(math.log2(NW)) + 6))
        A("s_lshl_b32 s%d, s%d, 6" % (sTMP2, sWV))
        A("s_add_u32 s%d, s%d, s%d" % (sTMP, sTMP, sTMP2))
        A("s_add_u32 s%d, s%d, 0x1000000" % (sTMP, sTMP))
        A("v_mov_b32 v11, 0")
        for k in range(4):
            for i in range(4):
                A("v_mov_b32 v%d, s%d" % (12 + i, sST + 4 * k + i))
            A("buffer_store_dwordx4 v[12:15], v11, s[%d:%d], s%d offen offset:%d" % (sWS, sWS + 3, sTMP, 16 * k))
            A("s_nop 2")
    LBL("L_end")
    A("s_endpgm")
    LBL("L_more")
    for r in range(NSET):
        inbox(r)
        if r == NSET - 1: A("s_sub_u32 s%d, s%d, 1" % (sIT, sIT))
        sample((r + 1) % NSET)
        A("s_cbranch_vccz L_fin")
    A("s_cbranch_scc0 L_more")
    finish()
    LBL("L_retry")
    recload()
    A("s_waitcnt vmcnt(0)")
    weights(0 if force == 4 else force)
    A("s_cbranch_vccz L_pub")
    C("splits not known to share one L2: mark the own share as undone; copy B is written through")
    A("v_or_b32 v%d, 1, v%d" % (vG, vG))
    A("v_readfirstlane_b32 s%d, v%d" % (sTMP, vTK))
    pub("")
    A("s_cmp_eq_u32 s%d, s%d" % (sTMP, sFAST))
    A("s_cbranch_scc1 L_slow")
    A("v_add_u32 v%d, 0x4000, v%d" % (vPOFF, vPOFF))
    A("v_add_u32 v%d, 0x4000, v%d" % (vT2, vT2))
    pub(" sc1")
    A("s_mov_b32 exec_lo, 1")
    A("s_mov_b32 exec_hi, 1")
    A("buffer_store_dwordx4 v[%d:%d], v%d, s[%d:%d], s%d offen sc1" % (vOR, vOR + 3, vT2, sWS, sWS + 3, sRS))
    A("s_mov_b64 exec, -1")
    C("last ticket with the splits spread over several XCDs: gather the B copies")
    A("s_lshr_b32 s%d, s%d, 4" % (sFAST, sTMP))
    A("s_and_b32 s%d, s%d, 0xf0f0f0f" % (sFAST, sFAST))
    A("s_and_b32 s%d, s%d, 0xf0f0f0f" % (sTMP, sTMP))
    A("s_add_u32 s%d, s%d, s%d" % (sTMP, sTMP, sFAST))
    A("s_mul_i32 s%d, s%d, 0x1010101" % (sTMP, sTMP))
    A("s_lshr_b32 s%d, s%d, 24" % (sTMP, sTMP))
    A("s_cmp_lg_u32 s%d, %d" % (sTMP, NSPLIT - 1))
    A("s_cbranch_scc1 %s" % ENDL)
    A("v_add_u32 v%d, 0x4000, v%d" % (vPL, vPL))
    A("v_add_u32 v%d, 0x4000, v%d" % (vRA, vRA))
    LBL("L_slow")
    C("all 8 shares, same arithmetic as their owners would do")
    A("v_and_b32 v%d, 0xffffffef, v%d" % (vRA, vRA))
    A("s_add_u32 s%d, s%d, 0x1000" % (sSLOT, sPB))
    A("s_lshl_b32 s%d, s%d, 9" % (sTMP2, sP))
    LBL("L_slowpoll")
    RC = SETA + 32
    for h in range(2):
        A("buffer_load_dwordx4 v[%d:%d], v%d, s[%d:%d], s%d offen%s sc1" % (RC + 4 * h, RC + 4 * h + 3, vRA, sWS, sWS + 3, sREC, " offset:16" if h else ""))
    for d in range(8):
        A("buffer_load_dwordx4 v[%d:%d], v%d, s[%d:%d], s%d offen%s sc1" % (SETA + 4 * d, SETA + 4 * d + 3, vPL, sWS, sWS + 3,
            sSLOT if d >= 4 else sPB, (" offset:%d" % (1024 * (d % 4))) if d % 4 else ""))
    A("s_sub_u32 s%d, s%d, 1" % (sIT, sIT))
    A("s_cbranch_scc1 %s" % ENDL)
    A("s_waitcnt vmcnt(0)")
    A("v_bitop3_b32 v%d, v%d, v%d, s%d bitop3:0x7e" % (vX + 1, RC + 2, RC + 6, sTAG))
    A("v_cmp_ne_u32 vcc, 0, v%d" % (vX + 1))
    A("s_cbranch_vccnz L_slowpoll")
    for d in range(8):
        untag(SETA + 4 * d, vX)
        A("v_or_b32 v%d, v%d, v%d" % (vX + 1, vX + 1, vX))
    A("v_cmp_lt_u32 vcc, 1, v%d" % (vX + 1))
    A("s_cbranch_vccnz L_slowpoll")
    for h in range(2):
        weights(0, RC + 4 * h, vW + 2 * h, 0)
    for d in range(8):
        wsum1(SETA + 4 * d, vW + 2 * (d // 4))
        wsum2(SETA + 4 * d, vW + 2 * (d // 4))
        A("s_nop 1")
        for ctl in ("row_ror:8", "row_ror:4"):
            A("v_add_f32_dpp v16, v16, v16 %s %s" % (ctl, DPPF))
            A("v_add_f32_dpp v17, v17, v17 %s %s" % (ctl, DPPF))
            A("s_nop 0")
        A("v_cvt_pk_bf16_f32 v%d, v16, v17" % (SETA + 4 * d))
        A("buffer_store_dword v%d, v%d, s[%d:%d], s%d offen%s" % (SETA + 4 * d, vOS1, sOUT, sOUT + 3, sTMP2, (" offset:%d" % (64 * d)) if d else ""))
    A("s_branch L_bump")

    out = HEADER
    out += "; @launch grid=(%d,1,1) block=(%d,1,1) lds=%d\n" % (NWG, NW * 64, LDS)
    out += '.amdgcn_target "amdgcn-amd-amdhsa--gfx950"\n.text\n'
    if al: out += ".p2align %d\n" % al
    out += ".globl %s_kernel\n.p2align 8\n.type %s_kernel,@function\n%s_kernel:\n" % (NAME, NAME, NAME)
    out += "\n".join(L) + "\n"
    out += '.section .rodata,"a"\n.p2align 6\n.amdhsa_kernel %s_kernel\n' % NAME
    out += "  .amdhsa_next_free_vgpr %d\n  .amdhsa_next_free_sgpr %d\n  .amdhsa_accum_offset %d\n" % (total_v, 96 if (stamps or asym or ka >= 4) else 64, total_v)
    out += "  .amdhsa_group_segment_fixed_size 0\n  .amdhsa_kernarg_size 72\n  .amdhsa_user_sgpr_count 2\n"
    out += "  .amdhsa_user_sgpr_kernarg_segment_ptr 1\n  .amdhsa_system_sgpr_workgroup_id_x 1\n"
    out += "  .amdhsa_float_denorm_mode_32 3\n"
    out += ".end_amdhsa_kernel\n"
    return out

if __name__ == "__main__":
    names = []
    for spec in sys.argv[1:]:
        kw = {}
        main = False
        for kv in spec.split(","):
            if kv == "MAIN": main = True; continue
            k, v = kv.split("=")
            kw[k] = int(v) if v.lstrip("-").isdigit() else v.replace("+", " ")
        n = "var/g14_" + spec.replace(",", "_").replace("=", "").replace("+", "") + ".s"
        if main: n = "cdna_kernels/%s.s" % NAME
        open("code/" + n, "w").write(gen(**kw))
        names.append(n)
    print(" ".join(names))
    print(str(["bench/bench.py", "bench/raw.py", "bench/flush.s", "bench/icev.s", "cdna_kernels/cdna_launch.py", "cdna_kernels/cdna_unwritten_srd_check.py"] + names).replace("'", '"'))
    print(str(names).replace("'", '"'))
```
